```python
import torch

def _softmax(x, axis=-1):
    return torch.softmax(x, dim=axis)
def _gelu(x):
    return torch.nn.functional.gelu(x, approximate="tanh")
def _silu(x):
    return torch.nn.functional.silu(x)
def _sigmoid(x):
    return torch.sigmoid(x)
def _layernorm(x, axis=-1, eps=1e-5):
    m = x.mean(dim=axis, keepdim=True)
    v = x.var(dim=axis, keepdim=True, unbiased=False)
    return (x - m) / torch.sqrt(v + eps)
def _scatter_add(tgt, idx, src, axis=0):
    return tgt.clone().index_add_(axis, idx, src)
def _segment_sum(src, seg, n):
    out = torch.zeros((n,) + src.shape[1:], dtype=src.dtype)
    return out.index_add_(0, seg, src)
def _pad(x, pw):
    flat = tuple(v for pair in reversed(pw) for v in pair)
    return torch.nn.functional.pad(x, flat)

kernel_name = 'standalone__paged_block_table_kv_pagedattention__sampling'

def setup_inputs():

    _w = (lambda a: (lambda t: t.to(torch.bfloat16) if t.is_floating_point() else t)(torch.as_tensor(a)))
    B, Hq, Hkv, Sq, Skv, D = 8, 32, 32, 16, 2048, 128
    bs = 16
    nbps = max(1, Skv // bs)
    num_phys = B * nbps + 4
    bt = torch.randperm(num_phys)[: B * nbps].reshape(B, nbps).to(torch.int64)
    cl = (nbps * bs - (torch.arange(1, B + 1, dtype=torch.int64) * 2654435761) % max(1, nbps * bs // 2)).to(torch.int64)
    return {
        "q": _w((lambda *s: torch.randn(*s, dtype=torch.bfloat16) * 0.8)(B, Hq, Sq, D)),
        "k_cache": _w((lambda *s: torch.randn(*s, dtype=torch.bfloat16) * 0.8)(num_phys, bs, Hkv, D)),
        "v_cache": _w((lambda *s: torch.randn(*s, dtype=torch.bfloat16) * 0.05)(num_phys, bs, Hkv, D)),
        "block_table": _w(bt),
        "context_lens": _w(cl),
    }

def reference(q, k_cache, v_cache, block_table, context_lens):
    B, Hq, Sq, D = q.shape
    bs = k_cache.shape[1]
    Hkv = k_cache.shape[2]
    nbps = block_table.shape[1]
    Skv = nbps * bs
    bt = block_table.reshape(-1)
    k = (lambda x, *d: x.permute(*d))(k_cache[bt].reshape(B, Skv, Hkv, D), 0, 2, 1, 3)
    v = (lambda x, *d: x.permute(*d))(v_cache[bt].reshape(B, Skv, Hkv, D), 0, 2, 1, 3)
    g = Hq // Hkv
    qg = q.reshape(B, Hkv, g, Sq, D)
    scores = torch.einsum("bhgqd,bhkd->bhgqk", qg, k) * (D ** -0.5)
    pos = torch.arange(Skv)
    msk = pos[None, :] < context_lens[:, None]
    scores = torch.where(msk[:, None, None, None, :], scores, -1e9)
    p = _softmax(scores, axis=-1)
    out = torch.einsum("bhgqk,bhkd->bhgqd", p, v)
    return out.reshape(B, Hq, Sq, D)
```

```python
import sys, argparse

NAME = "standalone__paged_block_table_kv_pagedattention__sampling"
HDR = open('cdna_kernels/%s.s.ref' % NAME).read().split('\n')
HDR = [l for l in HDR if l.startswith(';') and '@launch' not in l and 'Override' not in l and 'grid=ceil' not in l]

def gen(W=8, P=2, nt=True, lds=98304, compute=True):
    L = []
    e = L.append
    flags = " nt" if nt else ""
    nv = 1
    def va(n, align=1):
        nonlocal nv
        nv = (nv + align - 1) // align * align
        r = nv; nv += n; return r
    vLane = va(1); vC = va(1); vG = va(1); vT0 = va(1); vT1 = va(1); vT2 = va(1); vT3 = va(1)
    vKoff = va(2); vVoff = va(8)
    vBT = va(2, 2)
    vM = va(1); vLs = va(1); vAl = va(2, 2)
    vQ = va(16, 4)
    vS = va(8, 4)
    vP = va(4, 4)
    vO = va(32, 4)
    vVt = va(32, 4)
    vK = [va(32, 4) for _ in range(P)]
    vV = [va(32, 4) for _ in range(P)]
    NV = nv
    assert NV <= 512
    sK, sV, sQ, sBT, sOUT = 16, 20, 24, 28, 32
    sB, sH, sW, sLen, sNT, sC, sT, sTL, sO0, sO1, sSelLo, sSelHi, sTmp, sTmp2, sNeg = range(36, 51)
    def r(b, n): return "v[%d:%d]" % (b, b + n - 1)
    def sr(b, n=4): return "s[%d:%d]" % (b, b + n - 1)

    for l in HDR: e(l)
    e("; @launch grid=(256,1,1) block=(%d,1,1) lds=%d" % (W * 64, lds))
    e('.amdgcn_target "amdgcn-amd-amdhsa--gfx950"')
    e(".text")
    e(".globl %s_kernel" % NAME)
    e(".p2align 8")
    e(".type %s_kernel,@function" % NAME)
    e("%s_kernel:" % NAME)
    e("s_cmp_ge_u32 s2, 256")
    e("s_cbranch_scc1 L_end")
    e("s_load_dwordx8 s[4:11], s[0:1], 0")
    e("s_load_dwordx4 s[12:15], s[0:1], 32")
    e("v_lshrrev_b32 v%d, 6, v0" % vT0)
    e("v_and_b32 v%d, 63, v0" % vLane)
    e("v_readfirstlane_b32 s%d, v%d" % (sW, vT0))
    e("v_and_b32 v%d, 15, v0" % vC)
    e("v_bfe_u32 v%d, v0, 4, 2" % vG)
    e("s_lshr_b32 s%d, s2, 5" % sB)
    e("s_and_b32 s%d, s2, 31" % sH)
    e("v_lshlrev_b32 v%d, 4, v%d" % (vT0, vG))
    e("v_lshl_add_u32 v%d, v%d, 13, v%d" % (vKoff, vC, vT0))
    e("v_mov_b32 v%d, v%d" % (vKoff + 1, vKoff))
    e("v_lshl_add_u32 v%d, v%d, 8, v%d" % (vT1, vC, vT0))
    e("v_lshlrev_b32 v%d, 4, v%d" % (vT0, vC))
    e("v_lshl_add_u32 v%d, v%d, 15, v%d" % (vVoff, vG, vT0))
    for i in range(1, 4):
        e("v_add_u32 v%d, 0x%x, v%d" % (vVoff + i, i << 13, vVoff))
    for i in range(4):
        e("v_mov_b32 v%d, v%d" % (vVoff + 4 + i, vVoff + i))
    e("v_lshlrev_b32 v%d, 3, v%d" % (vT2, vLane))
    e("s_lshl_b32 s%d, s%d, 2" % (sTmp, sB))
    e("s_lshl_b32 s%d, s%d, 9" % (sTmp2, sB))
    e("s_mov_b32 s%d, 512" % (sBT + 2))
    e("s_mov_b32 s%d, 0x20000" % (sBT + 3))
    e("s_mov_b32 s%d, 4096" % (sQ + 2))
    e("s_mov_b32 s%d, 0x20000" % (sQ + 3))
    e("s_waitcnt lgkmcnt(0)")
    e("s_load_dword s%d, s[12:13], s%d" % (sLen, sTmp))
    e("s_add_u32 s%d, s10, s%d" % (sBT, sTmp2))
    e("s_addc_u32 s%d, s11, 0" % (sBT + 1))
    e("buffer_load_dwordx2 %s, v%d, %s, 0 offen" % (r(vBT, 2), vT2, sr(sBT)))
    e("s_lshl_b32 s%d, s2, 12" % sTmp2)
    e("s_add_u32 s%d, s4, s%d" % (sQ, sTmp2))
    e("s_addc_u32 s%d, s5, 0" % (sQ + 1))
    for j in range(4):
        e("buffer_load_dwordx4 %s, v%d, %s, 0 offen offset:%d" % (r(vQ + 4 * j, 4), vT1, sr(sQ), j * 64))
    e("s_add_u32 s%d, s14, s%d" % (sOUT, sTmp2))
    e("s_addc_u32 s%d, s15, 0" % (sOUT + 1))
    e("s_mov_b32 s%d, 4096" % (sOUT + 2))
    e("s_mov_b32 s%d, 0x20000" % (sOUT + 3))
    e("s_lshl_b32 s%d, s%d, 8" % (sTmp, sH))
    e("s_add_u32 s%d, s6, s%d" % (sK, sTmp))
    e("s_addc_u32 s%d, s7, 0" % (sK + 1))
    e("s_sub_u32 s%d, 0x8080000, s%d" % (sK + 2, sTmp))
    e("s_mov_b32 s%d, 0x20000" % (sK + 3))
    e("s_add_u32 s%d, s8, s%d" % (sV, sTmp))
    e("s_addc_u32 s%d, s9, 0" % (sV + 1))
    e("s_sub_u32 s%d, 0x8080000, s%d" % (sV + 2, sTmp))
    e("s_mov_b32 s%d, 0x20000" % (sV + 3))
    e("s_mov_b32 s%d, 0x05040100" % sSelLo)
    e("s_mov_b32 s%d, 0x07060302" % sSelHi)
    e("s_mov_b32 s%d, 0xf149f2ca" % sNeg)
    e("v_mov_b32 v%d, s%d" % (vM, sNeg))
    e("v_mov_b32 v%d, 0" % vLs)
    for i in range(32):
        e("v_mov_b32 v%d, 0" % (vO + i))
    e("s_waitcnt lgkmcnt(0)")
    import struct
    c0 = struct.unpack('<I', struct.pack('<f', (128 ** -0.5) * 1.4426950408889634))[0]
    e("s_cmp_lt_i32 s%d, 1" % sLen)
    e("s_cselect_b32 s%d, 0, 0x%x" % (sC, c0))
    e("s_cselect_b32 s%d, 2048, s%d" % (sLen, sLen))
    e("s_min_u32 s%d, s%d, 2048" % (sLen, sLen))
    e("s_add_u32 s%d, s%d, 31" % (sNT, sLen))
    e("s_lshr_b32 s%d, s%d, 5" % (sNT, sNT))
    e("s_mov_b32 s%d, s%d" % (sT, sW))
    e("s_mov_b32 s%d, s%d" % (sTL, sW))
    e("s_waitcnt vmcnt(4)")
    e("v_lshlrev_b32 v%d, 17, v%d" % (vBT, vBT))
    e("v_lshlrev_b32 v%d, 17, v%d" % (vBT + 1, vBT + 1))

    uid = [0]
    def fix_and_lanes():
        uid[0] += 1
        u = uid[0]
        e("s_lshl_b32 s%d, s%d, 5" % (sTmp, sTL))
        e("s_add_u32 s%d, s%d, 32" % (sTmp2, sTmp))
        e("s_cmp_le_u32 s%d, s%d" % (sTmp2, sLen))
        e("s_cbranch_scc1 L_nofix%d" % u)
        e("s_sub_i32 s%d, s%d, s%d" % (sTmp, sLen, sTmp))
        e("v_mov_b32 v%d, 0x40000000" % vT3)
        e("v_cmp_gt_i32 vcc, s%d, v%d" % (sTmp, vC))
        e("v_add_u32 v%d, 16, v%d" % (vT0, vC))
        e("s_nop 0")
        e("v_cndmask_b32 v%d, v%d, v%d, vcc" % (vKoff, vT3, vKoff))
        e("v_cmp_gt_i32 vcc, s%d, v%d" % (sTmp, vT0))
        e("v_lshlrev_b32 v%d, 2, v%d" % (vT0, vG))
        e("s_nop 0")
        e("v_cndmask_b32 v%d, v%d, v%d, vcc" % (vKoff + 1, vT3, vKoff + 1))
        for i in range(8):
            tok = i if i < 4 else 16 + i - 4
            e("v_add_u32 v%d, %d, v%d" % (vT1, tok, vT0))
            e("v_cmp_gt_i32 vcc, s%d, v%d" % (sTmp, vT1))
            e("s_nop 1")
            e("v_cndmask_b32 v%d, v%d, v%d, vcc" % (vVoff + i, vT3, vVoff + i))
        e("L_nofix%d:" % u)
        e("v_readlane_b32 s%d, v%d, s%d" % (sO0, vBT, sTL))
        e("v_readlane_b32 s%d, v%d, s%d" % (sO1, vBT + 1, sTL))
    def loadK(p):
        for blk in range(2):
            for j in range(4):
                e("buffer_load_dwordx4 %s, v%d, %s, s%d offen offset:%d%s" % (r(vK[p] + blk * 16 + j * 4, 4), vKoff + blk, sr(sK), sO0 + blk, j * 64, flags))
    def loadV(p):
        for i in range(8):
            e("buffer_load_dwordx4 %s, v%d, %s, s%d offen%s" % (r(vV[p] + i * 4, 4), vVoff + i, sr(sV), sO0 + (i >> 2), flags))

    e("s_nop 0")
    for p in range(P):
        fix_and_lanes()
        e("s_add_u32 s%d, s%d, %d" % (sTL, sTL, W))
        e("s_nop 3")
        loadK(p); loadV(p)
    e("s_cmp_ge_u32 s%d, s%d" % (sT, sNT))
    e("s_cbranch_scc1 L_epi")
    e("L_loop:")
    NW = 16 * P - 8
    for p in range(P):
        fix_and_lanes()
        e("s_add_u32 s%d, s%d, %d" % (sTL, sTL, W))
        e("s_waitcnt vmcnt(%d)" % NW)
        for j in range(4):
            for blk in range(2):
                c = "0" if j == 0 else r(vS + blk * 4, 4)
                e("v_mfma_f32_16x16x32_bf16 %s, %s, %s, %s" % (r(vS + blk * 4, 4), r(vK[p] + blk * 16 + j * 4, 4), r(vQ + 4 * j, 4), c))
        loadK(p)
        uid[0] += 1; u = uid[0]
        e("s_lshl_b32 s%d, s%d, 5" % (sTmp, sT))
        e("s_add_u32 s%d, s%d, 32" % (sTmp2, sTmp))
        e("s_cmp_le_u32 s%d, s%d" % (sTmp2, sLen))
        e("s_cbranch_scc1 L_nomask%d" % u)
        e("s_sub_i32 s%d, s%d, s%d" % (sTmp, sLen, sTmp))
        e("v_lshlrev_b32 v%d, 2, v%d" % (vT0, vG))
        e("v_mov_b32 v%d, s%d" % (vT3, sNeg))
        for i in range(8):
            tok = i if i < 4 else 16 + i - 4
            e("v_add_u32 v%d, %d, v%d" % (vT1, tok, vT0))
            e("v_cmp_gt_i32 vcc, s%d, v%d" % (sTmp, vT1))
            e("s_nop 1")
            e("v_cndmask_b32 v%d, v%d, v%d, vcc" % (vS + i, vT3, vS + i))
        e("L_nomask%d:" % u)
        e("v_max3_f32 v%d, v%d, v%d, v%d" % (vT0, vS, vS + 1, vS + 2))
        e("v_max3_f32 v%d, v%d, v%d, v%d" % (vT1, vS + 3, vS + 4, vS + 5))
        e("v_max3_f32 v%d, v%d, v%d, v%d" % (vT0, vT0, vS + 6, vS + 7))
        e("v_max_f32 v%d, v%d, v%d" % (vT0, vT0, vT1))
        e("v_mov_b32 v%d, v%d" % (vT1, vT0))
        e("s_nop 1")
        e("v_permlane32_swap_b32 v%d, v%d" % (vT0, vT1))
        e("v_max_f32 v%d, v%d, v%d" % (vT0, vT0, vT1))
        e("v_mov_b32 v%d, v%d" % (vT1, vT0))
        e("s_nop 1")
        e("v_permlane16_swap_b32 v%d, v%d" % (vT0, vT1))
        e("v_max_f32 v%d, v%d, v%d" % (vT0, vT0, vT1))
        e("v_mul_f32 v%d, s%d, v%d" % (vT0, sC, vT0))
        e("v_max_f32 v%d, v%d, v%d" % (vT0, vT0, vM))
        e("v_sub_f32 v%d, v%d, v%d" % (vT1, vM, vT0))
        e("v_exp_f32 v%d, v%d" % (vAl, vT1))
        e("v_mov_b32 v%d, v%d" % (vM, vT0))
        for i in range(8):
            e("v_fma_f32 v%d, v%d, s%d, -v%d" % (vS + i, vS + i, sC, vM))
        for i in range(8):
            e("v_exp_f32 v%d, v%d" % (vS + i, vS + i))
        e("v_mul_f32 v%d, v%d, v%d" % (vLs, vLs, vAl))
        for i in range(0, 32, 2):
            e("v_pk_mul_f32 %s, %s, %s op_sel_hi:[1,0]" % (r(vO + i, 2), r(vO + i, 2), r(vAl, 2)))
        e("v_add_f32 v%d, v%d, v%d" % (vT0, vS, vS + 1))
        e("v_add_f32 v%d, v%d, v%d" % (vT1, vS + 2, vS + 3))
        e("v_add_f32 v%d, v%d, v%d" % (vT2, vS + 4, vS + 5))
        e("v_add_f32 v%d, v%d, v%d" % (vT3, vS + 6, vS + 7))
        for i in range(4):
            e("v_cvt_pk_bf16_f32 v%d, v%d, v%d" % (vP + i, vS + 2 * i, vS + 2 * i + 1))
        e("v_add_f32 v%d, v%d, v%d" % (vT0, vT0, vT1))
        e("v_add_f32 v%d, v%d, v%d" % (vT2, vT2, vT3))
        e("v_add_f32 v%d, v%d, v%d" % (vT0, vT0, vT2))
        e("v_add_f32 v%d, v%d, v%d" % (vLs, vLs, vT0))
        e("s_waitcnt vmcnt(%d)" % NW)
        for dd in range(8):
            j = dd >> 1
            sel = sSelHi if dd & 1 else sSelLo
            for i2 in range(4):
                e("v_perm_b32 v%d, v%d, v%d, s%d" % (vVt + dd * 4 + i2, vV[p] + (2 * i2 + 1) * 4 + j, vV[p] + (2 * i2) * 4 + j, sel))
        loadV(p)
        for dd in range(8):
            e("v_mfma_f32_16x16x32_bf16 %s, %s, %s, %s" % (r(vO + dd * 4, 4), r(vVt + dd * 4, 4), r(vP, 4), r(vO + dd * 4, 4)))
        e("s_add_u32 s%d, s%d, %d" % (sT, sT, W))
        e("s_cmp_ge_u32 s%d, s%d" % (sT, sNT))
        if p < P - 1:
            e("s_cbranch_scc1 L_epi")
        else:
            e("s_cbranch_scc0 L_loop")
    e("L_epi:")
    e("v_mov_b32 v%d, v%d" % (vT1, vLs))
    e("s_nop 1")
    e("v_permlane32_swap_b32 v%d, v%d" % (vLs, vT1))
    e("v_add_f32 v%d, v%d, v%d" % (vLs, vLs, vT1))
    e("v_mov_b32 v%d, v%d" % (vT1, vLs))
    e("s_nop 1")
    e("v_permlane16_swap_b32 v%d, v%d" % (vLs, vT1))
    e("v_add_f32 v%d, v%d, v%d" % (vAl + 1, vLs, vT1))
    e("v_mov_b32 v%d, v%d" % (vAl, vM))
    ML = W * 8192
    e("s_lshl_b32 s%d, s%d, 9" % (sTmp, sW))
    e("s_add_u32 s%d, s%d, %d" % (sTmp, sTmp, ML))
    e("v_lshl_add_u32 v%d, v%d, 3, s%d" % (vT0, vLane, sTmp))
    e("ds_write_b64 v%d, %s" % (vT0, r(vAl, 2)))
    e("s_nop 4")
    for k in range(8):
        rr, half = k >> 1, k & 1
        for ee in range(4):
            e("v_mov_b32 v%d, v%d" % (vVt + k * 4 + ee, vO + (half * 4 + ee) * 4 + rr))
    e("s_lshl_b32 s%d, s%d, 13" % (sTmp, sW))
    e("v_lshl_add_u32 v%d, v%d, 4, s%d" % (vT1, vLane, sTmp))
    for k in range(8):
        e("ds_write_b128 v%d, %s offset:%d" % (vT1, r(vVt + k * 4, 4), k * 1024))
    e("s_waitcnt lgkmcnt(0)")
    e("s_barrier")
    NPC = 8 // W
    e("s_waitcnt vmcnt(0)")
    vML = vK[0]
    vOP = vV[0]
    e("v_lshlrev_b32 v%d, 3, v%d" % (vT0, vLane))
    e("v_add_u32 v%d, %d, v%d" % (vT0, ML, vT0))
    for w in range(W):
        e("ds_read_b64 %s, v%d offset:%d" % (r(vML + 2 * w, 2), vT0, w * 512))
    e("s_lshl_b32 s%d, s%d, %d" % (sTmp, sW, 10 + (NPC - 1).bit_length() if NPC > 1 else 10))
    e("v_lshl_add_u32 v%d, v%d, 4, s%d" % (vT1, vLane, sTmp))
    for w in range(W):
        for pc in range(NPC):
            off = w * 8192 + pc * 1024
            e("ds_read_b128 %s, v%d offset:%d" % (r(vOP + (w * NPC + pc) * 4, 4), vT1, off))
    e("s_waitcnt lgkmcnt(%d)" % min(15, W * NPC))
    e("v_max_f32 v%d, v%d, v%d" % (vT2, vML, vML + 2))
    for w in range(2, W, 2):
        e("v_max3_f32 v%d, v%d, v%d, v%d" % (vT2, vT2, vML + 2 * w, vML + 2 * w + 2))
    for w in range(W):
        e("v_sub_f32 v%d, v%d, v%d" % (vML + 2 * w, vML + 2 * w, vT2))
    for w in range(W):
        e("v_exp_f32 v%d, v%d" % (vML + 2 * w, vML + 2 * w))
    e("s_nop 0")
    e("v_mul_f32 v%d, v%d, v%d" % (vT3, vML, vML + 1))
    for w in range(1, W):
        e("v_fmac_f32 v%d, v%d, v%d" % (vT3, vML + 2 * w, vML + 2 * w + 1))
    e("v_rcp_f32 v%d, v%d" % (vT3, vT3))
    e("s_waitcnt lgkmcnt(0)")
    for pc in range(NPC):
        for ee in range(4):
            e("v_mul_f32 v%d, v%d, v%d" % (vS + pc * 4 + ee, vML, vOP + pc * 4 + ee))
    for w in range(1, W):
        for pc in range(NPC):
            for ee in range(4):
                e("v_fmac_f32 v%d, v%d, v%d" % (vS + pc * 4 + ee, vML + 2 * w, vOP + (w * NPC + pc) * 4 + ee))
    for i in range(4 * NPC):
        e("v_mul_f32 v%d, v%d, v%d" % (vS + i, vS + i, vT3))
    for i in range(2 * NPC):
        e("v_cvt_pk_bf16_f32 v%d, v%d, v%d" % (vP + i, vS + 2 * i, vS + 2 * i + 1))
    e("v_lshlrev_b32 v%d, 6, v%d" % (vT0, vG))
    e("v_lshl_add_u32 v%d, v%d, 8, v%d" % (vT0, vC, vT0))
    e("s_lshl_b32 s%d, s%d, %d" % (sTmp, sW, 3 + (NPC - 1).bit_length() if NPC > 1 else 3))
    if NPC == 1:
        e("buffer_store_dwordx2 %s, v%d, %s, s%d offen" % (r(vP, 2), vT0, sr(sOUT), sTmp))
    else:
        e("buffer_store_dwordx4 %s, v%d, %s, s%d offen" % (r(vP, 4), vT0, sr(sOUT), sTmp))
    e("L_end:")
    e("s_endpgm")
    e('.section .rodata,"a"')
    e(".p2align 6")
    e(".amdhsa_kernel %s_kernel" % NAME)
    nvr = max(NV, 8)
    e("  .amdhsa_next_free_vgpr %d" % nvr)
    e("  .amdhsa_next_free_sgpr 64")
    e("  .amdhsa_accum_offset %d" % min(256, (nvr + 3) // 4 * 4))
    e("  .amdhsa_group_segment_fixed_size 0")
    e("  .amdhsa_kernarg_size 64")
    e("  .amdhsa_user_sgpr_count 2")
    e("  .amdhsa_user_sgpr_kernarg_segment_ptr 1")
    e("  .amdhsa_system_sgpr_workgroup_id_x 1")
    e(".end_amdhsa_kernel")
    return "\n".join(L) + "\n", NV

if __name__ == "__main__":
    ap = argparse.ArgumentParser()
    ap.add_argument("-W", type=int, default=8)
    ap.add_argument("-P", type=int, default=2)
    ap.add_argument("--nont", action="store_true")
    ap.add_argument("-o", default="cdna_kernels/%s.s" % NAME)
    a = ap.parse_args()
    s, nv = gen(a.W, a.P, not a.nont)
    open(a.o, "w").write(s)
    print("NV", nv)
```

```python
import sys, argparse, struct

NAME = "standalone__paged_block_table_kv_pagedattention__sampling"
HDR = open('cdna_kernels/%s.s.ref' % NAME).read().split('\n')
HDR = [l for l in HDR if l.startswith(';') and '@launch' not in l and 'Override' not in l and 'grid=ceil' not in l]

def f2u(x): return struct.unpack('<I', struct.pack('<f', x))[0]

def gen(nt=True, I8=200, NMIN=16, NMAX=32, NSTEP=1, stamps=False, pf=False, fixedN=None, mix=0, xonly=None, fl=None):
    L = []
    e = L.append
    flags = " nt" if nt else ""
    if fl is not None: flags = " " + fl.replace(",", " ")
    R = 8
    FL = R * 16384
    MG = FL + 768
    LDS = MG + 2 * 4608
    def r(b, n): return "v[%d:%d]" % (b, b + n - 1)
    def sr(b, n=4): return "s[%d:%d]" % (b, b + n - 1)
    sK, sV, sBT, sQ, sOUT = 20, 24, 28, 20, 24
    sLens = 32
    sB, sH, sN, sLen, sT, sO0, sO1, sTmp, sTmp2, sSum, sTgt, sAcc, sDone, sLast, sC, sNeg, sFull, sNeed, sSlot, sCi = range(40, 60)
    sBH = 62
    ST = 64
    nst = [0]
    def stamp():
        if stamps:
            e("s_memrealtime s[%d:%d]" % (ST + 2 * nst[0], ST + 2 * nst[0] + 1)); nst[0] += 1
    def dump_stamps(role, vA, vB):
        if not stamps: return
        e("s_load_dwordx2 s[16:17], s[0:1], 56")
        e("s_waitcnt lgkmcnt(0)")
        for k in range(nst[0]):
            e("v_writelane_b32 v%d, s%d, %d" % (vA, ST + 2 * k, k))
        e("s_lshl_b32 s18, s2, 8")
        role_off = role if isinstance(role, str) else str(role * 64)
        e("s_add_u32 s18, s18, %s" % role_off)
        e("v_mbcnt_lo_u32_b32 v%d, -1, 0" % vB)
        e("v_mbcnt_hi_u32_b32 v%d, -1, v%d" % (vB, vB))
        e("v_lshl_add_u32 v%d, v%d, 2, s18" % (vB, vB))
        e("s_mov_b64 exec, 0xffff")
        e("global_store_dword v%d, v%d, s[16:17]" % (vB, vA))
        e("s_mov_b64 exec, -1")

    for l in HDR: e(l)
    e("; @launch grid=(256,1,1) block=(192,1,1) lds=%d" % LDS)
    e('.amdgcn_target "amdgcn-amd-amdhsa--gfx950"')
    e(".text")
    e(".globl %s_kernel" % NAME)
    e(".p2align 8")
    e(".type %s_kernel,@function" % NAME)
    e("%s_kernel:" % NAME)
    stamp()
    e("s_cmp_ge_u32 s2, 256")
    e("s_cbranch_scc1 L_end")
    e("s_load_dwordx8 s[4:11], s[0:1], 0")
    e("s_load_dwordx4 s[12:15], s[0:1], 32")
    vC, vG, vLane = 1, 2, 3
    e("v_readfirstlane_b32 s3, v0")
    e("s_lshr_b32 s%d, s2, 5" % sB)
    if xonly is not None:
        e("s_and_b32 s%d, s2, 7" % sH)
        e("s_cmp_ge_u32 s%d, %d" % (sH, xonly))
        e("s_cbranch_scc1 L_end")
    if mix == 0:
        e("s_and_b32 s%d, s2, 31" % sH)
    elif mix == 1:
        e("s_add_u32 s%d, s2, s%d" % (sH, sB))
        e("s_and_b32 s%d, s%d, 7" % (sH, sH))
        e("s_and_b32 s%d, s2, 24" % sTmp)
        e("s_or_b32 s%d, s%d, s%d" % (sH, sH, sTmp))
    elif mix == 2:
        e("s_and_b32 s%d, s2, 7" % sH)
        e("s_lshl_b32 s%d, s%d, 2" % (sH, sH))
        e("s_bfe_u32 s%d, s2, 0x20003" % sTmp)
        e("s_or_b32 s%d, s%d, s%d" % (sH, sH, sTmp))
    elif mix == 3:
        e("s_add_u32 s%d, s2, s%d" % (sH, sB))
        e("s_and_b32 s%d, s%d, 7" % (sH, sH))
        e("s_lshl_b32 s%d, s%d, 2" % (sH, sH))
        e("s_bfe_u32 s%d, s2, 0x20003" % sTmp)
        e("s_or_b32 s%d, s%d, s%d" % (sH, sH, sTmp))
    e("s_lshl_b32 s%d, s%d, 5" % (sBH, sB))
    e("s_or_b32 s%d, s%d, s%d" % (sBH, sBH, sH))
    e("v_and_b32 v%d, 15, v0" % vC)
    e("v_bfe_u32 v%d, v0, 4, 2" % vG)
    e("v_and_b32 v%d, 63, v0" % vLane)
    e("s_cmp_lg_u32 s3, 0")
    e("s_cbranch_scc1 L_cons")
    vA, vBb, vBT, vT0, vT1, vF, vFA, vD, vDA, vOOB = 4, 8, 12, 14, 15, 16, 17, 18, 19, 20
    e("v_xor_b32 v%d, v%d, v%d" % (vT0, vC, vG))
    e("v_lshlrev_b32 v%d, 4, v%d" % (vT0, vT0))
    e("v_lshl_add_u32 v%d, v%d, 13, v%d" % (vA, vG, vT0))
    e("v_lshlrev_b32 v%d, 3, v%d" % (vT1, vLane))
    for i in range(1, 4):
        e("v_xor_b32 v%d, %d, v%d" % (vA + i, i * 64, vA))
        e("v_add_u32 v%d, %d, v%d" % (vA + i, i * 31744, vA + i))
    for i in range(4):
        e("v_mov_b32 v%d, v%d" % (vBb + i, vA + i))
    e("s_lshl_b32 s%d, s%d, 2" % (sTmp, sB))
    e("s_lshl_b32 s%d, s%d, 9" % (sTmp2, sB))
    e("s_mov_b32 s%d, 512" % (sBT + 2))
    e("s_mov_b32 s%d, 0x20000" % (sBT + 3))
    e("s_lshl_b32 s%d, s%d, 8" % (sO0, sH))
    e("s_sub_u32 s%d, 0x8080000, s%d" % (sK + 2, sO0))
    e("s_mov_b32 s%d, 0x20000" % (sK + 3))
    e("s_mov_b32 s%d, s%d" % (sV + 2, sK + 2))
    e("s_mov_b32 s%d, 0x20000" % (sV + 3))
    e("s_mov_b32 s%d, 0" % sT)
    e("s_waitcnt lgkmcnt(0)")
    stamp()
    e("s_add_u32 s%d, s10, s%d" % (sBT, sTmp2))
    e("s_addc_u32 s%d, s11, 0" % (sBT + 1))
    e("buffer_load_dwordx2 %s, v%d, %s, 0 offen" % (r(vBT, 2), vT1, sr(sBT)))
    e("s_load_dword s%d, s[12:13], s%d" % (sLen, sTmp))
    e("s_load_dwordx8 %s, s[12:13], 0" % sr(sLens, 8))
    e("s_add_u32 s%d, s6, s%d" % (sK, sO0))
    e("s_addc_u32 s%d, s7, 0" % (sK + 1))
    e("s_add_u32 s%d, s8, s%d" % (sV, sO0))
    e("s_addc_u32 s%d, s9, 0" % (sV + 1))
    e("v_lshlrev_b32 v%d, 2, v%d" % (vFA, vLane))
    e("v_add_u32 v%d, %d, v%d" % (vFA, FL, vFA))
    e("v_add_u32 v%d, %d, v%d" % (vDA, 512, vFA))
    e("s_waitcnt lgkmcnt(0)")
    e("s_sub_u32 s%d, s%d, 1" % (sLen, sLen))
    e("s_min_u32 s%d, s%d, 2047" % (sLen, sLen))
    e("s_lshr_b32 s%d, s%d, 5" % (sLast, sLen))
    e("s_add_u32 s%d, s%d, 1" % (sLen, sLen))
    e("s_waitcnt vmcnt(0)")
    stamp()
    e("v_lshlrev_b32 v%d, 17, v%d" % (vBT, vBT))
    e("v_lshlrev_b32 v%d, 17, v%d" % (vBT + 1, vBT + 1))
    e("L_U:")
    e("s_cmp_lg_u32 s%d, s%d" % (sT, sLast))
    e("s_cbranch_scc0 L_fix")
    e("L_U2:")
    e("v_readlane_b32 s%d, v%d, s%d" % (sO0, vBT, sT))
    e("v_readlane_b32 s%d, v%d, s%d" % (sO1, vBT + 1, sT))
    e("s_and_b32 s%d, s%d, %d" % (sTmp, sT, R - 1))
    e("s_lshl_b32 m0, s%d, 14" % sTmp)
    e("s_nop 2")
    def ld(srd, blk, i, vo):
        e("buffer_load_dwordx4 v%d, %s, s%d offen offset:%d%s lds" % (vo + i, sr(srd), sO0 + blk, i * 1024, flags))
    for u in range(4):
        if u: e("s_add_u32 m0, m0, 4096"); e("s_nop 0")
        for i in range(4):
            ld(sK if u < 2 else sV, u & 1, i, vBb if u & 1 else vA)
    e("s_cmp_lg_u32 s%d, 0" % sT)
    e("s_cbranch_scc1 L_drain")
    e("s_barrier")
    e("s_cmp_eq_u32 s%d, 0" % sLast)
    e("s_cbranch_scc1 L_drain")
    e("ds_read_b32 v%d, v%d" % (vD, vDA))
    e("s_mov_b32 s%d, 1" % sT)
    Ns = list(range(NMIN, NMAX + 1, NSTEP))
    if fixedN is None:
        e("s_mov_b32 s%d, 8" % sSum)
        for i in range(8):
            e("s_sub_u32 s%d, s%d, 1" % (sLens + i, sLens + i))
            e("s_min_u32 s%d, s%d, 2047" % (sLens + i, sLens + i))
            e("s_lshr_b32 s%d, s%d, 5" % (sLens + i, sLens + i))
            e("s_add_u32 s%d, s%d, s%d" % (sSum, sSum, sLens + i))
        e("s_add_u32 s%d, s%d, 1" % (sTgt, sLast))
        e("s_mul_i32 s%d, s%d, %d" % (sTgt, sTgt, I8))
        e("s_mul_i32 s%d, s%d, %d" % (sAcc, sSum, NMIN))
        if NSTEP > 1: e("s_mul_i32 s%d, s%d, %d" % (sSum, sSum, NSTEP))
        for N in Ns[:-1]:
            e("s_cmp_le_u32 s%d, s%d" % (sTgt, sAcc))
            e("s_cbranch_scc1 L_N%d" % N)
            e("s_add_u32 s%d, s%d, s%d" % (sAcc, sAcc, sSum))
        e("s_branch L_N%d" % Ns[-1])
    else:
        Ns = [fixedN]
    for N in Ns:
        ps = [p for p in range(16) if (p + 2 - N) % 8 == 0]
        v0 = 2 + (ps[0] + 2 - N) // 8 - 1
        e("L_N%d:" % N)
        e("v_mov_b32 v%d, %d" % (vF, v0))
        e("L_top%d:" % N)
        e("v_readlane_b32 s%d, v%d, s%d" % (sO0, vBT, sT))
        e("v_readlane_b32 s%d, v%d, s%d" % (sO1, vBT + 1, sT))
        e("s_sub_u32 s%d, s%d, %d" % (sTmp2, sT, R - 1))
        e("L_chk%d:" % N)
        e("s_waitcnt lgkmcnt(0)")
        e("v_readfirstlane_b32 s%d, v%d" % (sDone, vD))
        e("s_cmp_ge_i32 s%d, s%d" % (sDone, sTmp2))
        e("s_cbranch_scc1 L_ok%d" % N)
        e("ds_read_b32 v%d, v%d" % (vD, vDA))
        e("s_branch L_chk%d" % N)
        e("L_ok%d:" % N)
        e("s_cmp_eq_u32 s%d, s%d" % (sT, sLast))
        e("s_cbranch_scc1 L_fix")
        e("s_and_b32 s%d, s%d, %d" % (sTmp, sT, R - 1))
        e("s_lshl_b32 m0, s%d, 14" % sTmp)
        e("v_xor_b32 v%d, %d, v%d" % (vDA, 768, vDA))
        for p in range(16):
            u, i = p >> 2, p & 3
            if u and i == 0: e("s_add_u32 m0, m0, 4096"); e("s_nop 0")
            ld(sK if u < 2 else sV, u & 1, i, vA)
            if p == 8: e("ds_read_b32 v%d, v%d" % (vD, vDA))
            e("s_waitcnt vmcnt(%d)" % (N - 1))
            if p in ps:
                e("v_add_u32 v%d, 1, v%d" % (vF, vF))
                e("ds_write_b32 v%d, v%d" % (vFA, vF))
        e("s_add_u32 s%d, s%d, 1" % (sT, sT))
        e("s_branch L_top%d" % N)
    e("L_fix:")
    e("s_lshl_b32 s%d, s%d, 5" % (sTmp, sT))
    e("s_sub_u32 s%d, s%d, s%d" % (sTmp, sLen, sTmp))
    e("v_mov_b32 v%d, 0x40000000" % vOOB)
    for k in range(8):
        tok = (k & 3) * 4 + (k >> 2) * 16
        reg = (vA if k < 4 else vBb) + (k & 3)
        e("v_add_u32 v%d, %d, v%d" % (vT0, tok, vG))
        e("v_cmp_gt_u32 vcc, s%d, v%d" % (sTmp, vT0))
        e("s_nop 1")
        e("v_cndmask_b32 v%d, v%d, v%d, vcc" % (reg, vOOB, reg))
    e("s_branch L_U2")
    e("L_drain:")
    stamp()
    e("s_lshl_b32 s%d, s%d, 1" % (sTmp, sLast))
    hi = (NMAX + 16 + 7) // 8
    hi = min(hi, 7)
    e("s_sub_u32 s%d, s%d, %d" % (sTmp, sTmp, hi - 2))
    e("v_mov_b32 v%d, s%d" % (vF, sTmp))
    for k in range(hi - 1, -1, -1):
        e("v_add_u32 v%d, 1, v%d" % (vF, vF))
        e("s_waitcnt vmcnt(%d)" % (8 * k))
        e("ds_write_b32 v%d, v%d" % (vFA, vF))
    stamp()
    dump_stamps(0, vT0, vT1)
    e("s_endpgm")
    nst[0] = 1
    nv = 4
    def va(n, align=1):
        nonlocal nv
        nv = (nv + align - 1) // align * align
        x = nv; nv += n; return x
    vT0 = va(1); vT1 = va(1); vT2 = va(1); vT3 = va(1)
    vKb = va(4); vVb = va(4); vKa = va(4); vVa = va(4)
    vFA = va(1); vDA = va(1); vF = va(1); vM = va(1); vLs = va(1); vAl = va(2, 2)
    vQ = va(16, 4); vS = va(8, 4); vP = va(4, 4); vO = va(32, 4); vKf = va(32, 4); vVt = va(32, 4)
    NV = nv
    e("L_cons:")
    e("s_lshr_b32 s%d, s3, 7" % sCi)
    e("v_lshlrev_b32 v%d, 2, v%d" % (vFA, vLane))
    e("v_add_u32 v%d, %d, v%d" % (vFA, FL, vFA))
    e("s_lshl_b32 s%d, s%d, 8" % (sTmp, sCi))
    e("s_add_u32 s%d, s%d, 256" % (sTmp, sTmp))
    e("v_add_u32 v%d, s%d, v%d" % (vDA, sTmp, vFA))
    e("v_mov_b32 v%d, 0" % vF)
    e("ds_write_b32 v%d, v%d" % (vFA, vF))
    e("ds_write_b32 v%d, v%d" % (vDA, vF))
    e("v_lshlrev_b32 v%d, 4, v%d" % (vT0, vG))
    e("v_lshl_add_u32 v%d, v%d, 8, v%d" % (vT1, vC, vT0))
    e("s_lshl_b32 s%d, s%d, 2" % (sTmp, sB))
    e("s_lshl_b32 s%d, s%d, 12" % (sTmp2, sBH))
    e("s_mov_b32 s%d, 4096" % (sQ + 2))
    e("s_mov_b32 s%d, 0x20000" % (sQ + 3))
    e("s_waitcnt lgkmcnt(0)")
    e("s_barrier")
    e("s_load_dword s%d, s[12:13], s%d" % (sLen, sTmp))
    e("s_add_u32 s%d, s4, s%d" % (sQ, sTmp2))
    e("s_addc_u32 s%d, s5, 0" % (sQ + 1))
    for j in range(4):
        e("buffer_load_dwordx4 %s, v%d, %s, 0 offen offset:%d" % (r(vQ + 4 * j, 4), vT1, sr(sQ), j * 64))
    if pf:
        e("s_getpc_b64 s[60:61]")
        e("L_pc:")
        e("s_sub_u32 s60, s60, L_pc-%s_kernel" % NAME)
        e("s_subb_u32 s61, s61, 0")
        e("v_lshlrev_b32 v%d, 7, v%d" % (vT2, vLane))
        e("v_min_u32 v%d, L_end-%s_kernel, v%d" % (vT2, NAME, vT2))
        e("global_load_dword v%d, v%d, s[60:61]" % (vT3, vT2))
    e("s_add_u32 s%d, s14, s%d" % (sOUT, sTmp2))
    e("s_addc_u32 s%d, s15, 0" % (sOUT + 1))
    e("s_mov_b32 s%d, 4096" % (sOUT + 2))
    e("s_mov_b32 s%d, 0x20000" % (sOUT + 3))
    e("v_xor_b32 v%d, v%d, v%d" % (vT0, vG, vC))
    e("v_lshlrev_b32 v%d, 4, v%d" % (vT0, vT0))
    e("v_lshl_add_u32 v%d, v%d, 8, v%d" % (vKb, vC, vT0))
    for j in range(1, 4):
        e("v_xor_b32 v%d, %d, v%d" % (vKb + j, j * 64, vKb))
    e("v_lshrrev_b32 v%d, 2, v%d" % (vT0, vLane))
    e("v_and_b32 v%d, 3, v%d" % (vT2 if not pf else vVa, vLane))
    tt = vT2 if not pf else vVa
    e("v_lshlrev_b32 v%d, 2, v%d" % (tt, tt))
    e("v_xor_b32 v%d, v%d, v%d" % (tt, tt, vT0))
    e("v_lshlrev_b32 v%d, 4, v%d" % (tt, tt))
    e("v_lshl_add_u32 v%d, v%d, 8, v%d" % (vVb, vT0, tt))
    e("s_lshl_b32 s%d, s%d, 5" % (sTmp, sCi))
    e("v_xor_b32 v%d, s%d, v%d" % (vVb, sTmp, vVb))
    for j in range(1, 4):
        e("v_xor_b32 v%d, %d, v%d" % (vVb + j, j * 16, vVb))
    e("s_mov_b32 s%d, 0xf149f2ca" % sNeg)
    e("v_mov_b32 v%d, s%d" % (vM, sNeg))
    e("v_mov_b32 v%d, 0" % vLs)
    for i in range(32):
        e("v_mov_b32 v%d, 0" % (vO + i))
    e("s_mov_b32 s%d, 0" % sFull)
    e("s_waitcnt lgkmcnt(0)")
    e("s_cmp_lt_i32 s%d, 1" % sLen)
    e("s_cselect_b32 s%d, 0, 0x%x" % (sC, f2u((128 ** -0.5) * 1.4426950408889634)))
    e("s_sub_u32 s%d, s%d, 1" % (sLen, sLen))
    e("s_min_u32 s%d, s%d, 2047" % (sLen, sLen))
    e("s_lshr_b32 s%d, s%d, 5" % (sLast, sLen))
    e("s_add_u32 s%d, s%d, 1" % (sLen, sLen))
    e("s_mov_b32 s%d, s%d" % (sT, sCi))
    e("s_waitcnt vmcnt(0)")
    stamp()
    e("s_cmp_gt_u32 s%d, s%d" % (sT, sLast))
    e("s_cbranch_scc1 L_epi")
    def poll(tag):
        e("L_poll%s:" % tag)
        e("s_cmp_ge_i32 s%d, s%d" % (sFull, sNeed))
        e("s_cbranch_scc1 L_go%s" % tag)
        e("ds_read_b32 v%d, v%d" % (vF, vFA))
        e("s_waitcnt lgkmcnt(0)")
        e("v_readfirstlane_b32 s%d, v%d" % (sFull, vF))
        e("s_branch L_poll%s" % tag)
        e("L_go%s:" % tag)
    e("L_loop:")
    e("s_lshl_b32 s%d, s%d, 1" % (sNeed, sT))
    e("s_add_u32 s%d, s%d, 1" % (sNeed, sNeed))
    e("s_and_b32 s%d, s%d, %d" % (sSlot, sT, R - 1))
    e("s_lshl_b32 s%d, s%d, 14" % (sSlot, sSlot))
    for j in range(4):
        e("v_or_b32 v%d, s%d, v%d" % (vKa + j, sSlot, vKb + j))
    for j in range(4):
        e("v_or_b32 v%d, s%d, v%d" % (vVa + j, sSlot, vVb + j))
    poll("K")
    if stamps:
        e("s_cmp_gt_u32 s%d, 1" % sT)
        e("s_cbranch_scc1 L_nost")
        stamp()
        e("s_waitcnt lgkmcnt(0)")
        e("L_nost:")
    for j in range(4):
        for blk in range(2):
            e("ds_read_b128 %s, v%d offset:%d" % (r(vKf + (j * 2 + blk) * 4, 4), vKa + j, blk * 4096))
    e("s_add_u32 s%d, s%d, 1" % (sNeed, sNeed))
    for j in range(4):
        e("s_waitcnt lgkmcnt(%d)" % (6 - 2 * j))
        for blk in range(2):
            c = "0" if j == 0 else r(vS + blk * 4, 4)
            e("v_mfma_f32_16x16x32_bf16 %s, %s, %s, %s" % (r(vS + blk * 4, 4), r(vKf + (j * 2 + blk) * 4, 4), r(vQ + 4 * j, 4), c))
    e("s_cmp_eq_u32 s%d, s%d" % (sT, sLast))
    e("s_nop 6")
    e("s_cbranch_scc1 L_mask")
    e("L_nomask:")
    e("v_max3_f32 v%d, v%d, v%d, v%d" % (vT0, vS, vS + 1, vS + 2))
    e("v_max3_f32 v%d, v%d, v%d, v%d" % (vT1, vS + 4, vS + 5, vS + 6))
    e("v_max3_f32 v%d, v%d, v%d, v%d" % (vT0, vT0, vS + 3, vS + 7))
    e("v_max_f32 v%d, v%d, v%d" % (vT0, vT0, vT1))
    e("v_mov_b32 v%d, v%d" % (vT1, vT0))
    e("s_nop 1")
    e("v_permlane32_swap_b32 v%d, v%d" % (vT0, vT1))
    e("v_max_f32 v%d, v%d, v%d" % (vT0, vT0, vT1))
    e("v_mov_b32 v%d, v%d" % (vT1, vT0))
    e("s_nop 1")
    e("v_permlane16_swap_b32 v%d, v%d" % (vT0, vT1))
    e("v_max_f32 v%d, v%d, v%d" % (vT0, vT0, vT1))
    e("v_mul_f32 v%d, s%d, v%d" % (vT0, sC, vT0))
    e("v_max_f32 v%d, v%d, v%d" % (vT0, vT0, vM))
    e("v_sub_f32 v%d, v%d, v%d" % (vT1, vM, vT0))
    e("v_exp_f32 v%d, v%d" % (vAl, vT1))
    e("v_mov_b32 v%d, v%d" % (vM, vT0))
    for i in range(8):
        e("v_fma_f32 v%d, v%d, s%d, -v%d" % (vS + i, vS + i, sC, vM))
    for i in range(8):
        e("v_exp_f32 v%d, v%d" % (vS + i, vS + i))
    e("v_mul_f32 v%d, v%d, v%d" % (vLs, vLs, vAl))
    for i in range(0, 32, 2):
        e("v_pk_mul_f32 %s, %s, %s op_sel_hi:[1,0]" % (r(vO + i, 2), r(vO + i, 2), r(vAl, 2)))
    for i in range(4):
        e("v_cvt_pk_bf16_f32 v%d, v%d, v%d" % (vP + i, vS + 2 * i, vS + 2 * i + 1))
    poll("V")
    def vread(dd):
        for blk in range(2):
            e("ds_read_b64_tr_b16 %s, v%d offset:%d" % (r(vVt + dd * 4 + blk * 2, 2), vVa + (dd >> 1), 8192 + blk * 4096 + (dd & 1) * 8))
    for dd in range(7): vread(dd)
    e("v_add_f32 v%d, v%d, v%d" % (vT0, vS, vS + 1))
    e("v_add_f32 v%d, v%d, v%d" % (vT1, vS + 2, vS + 3))
    e("v_add_f32 v%d, v%d, v%d" % (vT2, vS + 4, vS + 5))
    e("v_add_f32 v%d, v%d, v%d" % (vT3, vS + 6, vS + 7))
    e("v_add_f32 v%d, v%d, v%d" % (vT0, vT0, vT1))
    e("v_add_f32 v%d, v%d, v%d" % (vT2, vT2, vT3))
    e("s_add_u32 s%d, s%d, 1" % (sTmp, sT))
    e("v_add_f32 v%d, v%d, v%d" % (vT0, vT0, vT2))
    e("v_mov_b32 v%d, s%d" % (vF, sTmp))
    e("v_add_f32 v%d, v%d, v%d" % (vLs, vLs, vT0))
    for dd in range(8):
        e("s_waitcnt lgkmcnt(%d)" % (12 if dd == 0 else 14 - 2 * dd))
        if dd == 7: e("ds_write_b32 v%d, v%d" % (vDA, vF))
        e("v_mfma_f32_16x16x32_bf16 %s, %s, %s, %s" % (r(vO + dd * 4, 4), r(vVt + dd * 4, 4), r(vP, 4), r(vO + dd * 4, 4)))
        if dd == 0: vread(7)
    e("s_add_u32 s%d, s%d, 2" % (sT, sT))
    e("s_cmp_le_u32 s%d, s%d" % (sT, sLast))
    e("s_cbranch_scc1 L_loop")
    e("L_epi:")
    stamp()
    e("v_mov_b32 v%d, v%d" % (vT1, vLs))
    e("s_mul_i32 s%d, s%d, 4608" % (sTmp, sCi))
    e("s_add_u32 s%d, s%d, %d" % (sTmp, sTmp, MG))
    e("v_permlane32_swap_b32 v%d, v%d" % (vLs, vT1))
    e("v_add_f32 v%d, v%d, v%d" % (vLs, vLs, vT1))
    e("v_mov_b32 v%d, v%d" % (vT1, vLs))
    e("v_lshl_add_u32 v%d, v%d, 4, s%d" % (vT2, vLane, sTmp))
    e("v_lshl_add_u32 v%d, v%d, 3, s%d" % (vT3, vLane, sTmp))
    e("v_permlane16_swap_b32 v%d, v%d" % (vLs, vT1))
    e("v_add_f32 v%d, v%d, v%d" % (vAl + 1, vLs, vT1))
    e("v_mov_b32 v%d, v%d" % (vAl, vM))
    e("ds_write_b64 v%d, %s offset:4096" % (vT3, r(vAl, 2)))
    for i in range(4):
        e("ds_write_b128 v%d, %s offset:%d" % (vT2, r(vO + 16 + 4 * i, 4), i * 1024))
    e("s_sub_u32 s%d, %d, s%d" % (sTmp, 2 * MG + 4608, sTmp))
    e("v_lshl_add_u32 v%d, v%d, 4, s%d" % (vT2, vLane, sTmp))
    e("v_lshl_add_u32 v%d, v%d, 3, s%d" % (vT3, vLane, sTmp))
    e("v_lshlrev_b32 v%d, 6, v%d" % (vT0, vG))
    e("v_lshl_add_u32 v%d, v%d, 8, v%d" % (vT0, vC, vT0))
    e("s_lshl_b32 s%d, s%d, 5" % (sTmp, sCi))
    e("s_waitcnt lgkmcnt(0)")
    e("s_barrier")
    e("ds_read_b64 %s, v%d offset:4096" % (r(vS, 2), vT3))
    for i in range(4):
        e("ds_read_b128 %s, v%d offset:%d" % (r(vVt + 4 * i, 4), vT2, i * 1024))
    e("s_waitcnt lgkmcnt(4)")
    e("v_max_f32 v%d, v%d, v%d" % (vT1, vM, vS))
    e("v_sub_f32 v%d, v%d, v%d" % (vS + 2, vM, vT1))
    e("v_sub_f32 v%d, v%d, v%d" % (vS + 4, vS, vT1))
    e("v_exp_f32 v%d, v%d" % (vS + 2, vS + 2))
    e("v_exp_f32 v%d, v%d" % (vS + 4, vS + 4))
    e("s_nop 0")
    e("v_mul_f32 v%d, v%d, v%d" % (vT1, vS + 2, vAl + 1))
    e("v_fmac_f32 v%d, v%d, v%d" % (vT1, vS + 4, vS + 1))
    e("v_rcp_f32 v%d, v%d" % (vT1, vT1))
    e("s_nop 0")
    e("v_mul_f32 v%d, v%d, v%d" % (vS + 2, vS + 2, vT1))
    e("v_mul_f32 v%d, v%d, v%d" % (vS + 4, vS + 4, vT1))
    for i in range(0, 16, 2):
        e("v_pk_mul_f32 %s, %s, %s op_sel_hi:[1,0]" % (r(vO + i, 2), r(vO + i, 2), r(vS + 2, 2)))
    e("s_waitcnt lgkmcnt(0)")
    for i in range(0, 16, 2):
        e("v_pk_fma_f32 %s, %s, %s, %s op_sel_hi:[1,0,1]" % (r(vO + i, 2), r(vVt + i, 2), r(vS + 4, 2), r(vO + i, 2)))
    for i in range(8):
        e("v_cvt_pk_bf16_f32 v%d, v%d, v%d" % (vKf + i, vO + 2 * i, vO + 2 * i + 1))
    e("buffer_store_dwordx4 %s, v%d, %s, s%d offen" % (r(vKf, 4), vT0, sr(sOUT), sTmp))
    e("buffer_store_dwordx4 %s, v%d, %s, s%d offen offset:16" % (r(vKf + 4, 4), vT0, sr(sOUT), sTmp))
    if stamps:
        stamp()
        e("s_waitcnt vmcnt(0)")
        stamp()
        e("s_lshl_b32 s19, s%d, 6" % sCi)
        e("s_add_u32 s19, s19, 64")
        dump_stamps("s19", vT2, vT3)
    e("s_endpgm")
    e("L_mask:")
    e("s_lshl_b32 s%d, s%d, 5" % (sTmp, sT))
    e("s_sub_u32 s%d, s%d, s%d" % (sTmp, sLen, sTmp))
    e("v_lshlrev_b32 v%d, 2, v%d" % (vT0, vG))
    e("v_mov_b32 v%d, s%d" % (vT3, sNeg))
    for i in range(8):
        tok = i if i < 4 else 16 + i - 4
        e("v_add_u32 v%d, %d, v%d" % (vT1, tok, vT0))
        e("v_cmp_gt_u32 vcc, s%d, v%d" % (sTmp, vT1))
        e("s_nop 1")
        e("v_cndmask_b32 v%d, v%d, v%d, vcc" % (vS + i, vT3, vS + i))
    e("s_branch L_nomask")
    e("L_end:")
    e("s_endpgm")
    e('.section .rodata,"a"')
    e(".p2align 6")
    e(".amdhsa_kernel %s_kernel" % NAME)
    e("  .amdhsa_next_free_vgpr %d" % NV)
    e("  .amdhsa_next_free_sgpr 96")
    e("  .amdhsa_accum_offset %d" % ((NV + 3) // 4 * 4))
    e("  .amdhsa_group_segment_fixed_size 0")
    e("  .amdhsa_kernarg_size 64")
    e("  .amdhsa_user_sgpr_count 2")
    e("  .amdhsa_user_sgpr_kernarg_segment_ptr 1")
    e("  .amdhsa_system_sgpr_workgroup_id_x 1")
    e(".end_amdhsa_kernel")
    return "\n".join(L) + "\n", NV

if __name__ == "__main__":
    ap = argparse.ArgumentParser()
    ap.add_argument("--nont", action="store_true")
    ap.add_argument("--I8", type=int, default=200)
    ap.add_argument("--nmin", type=int, default=16)
    ap.add_argument("--nmax", type=int, default=32)
    ap.add_argument("--nstep", type=int, default=1)
    ap.add_argument("--fixed", type=int, default=None)
    ap.add_argument("--stamps", action="store_true")
    ap.add_argument("--pf", action="store_true")
    ap.add_argument("--mix", type=int, default=0)
    ap.add_argument("--fl", default=None)
    ap.add_argument("--xonly", type=int, default=None)
    ap.add_argument("-o", default="cdna_kernels/%s.s" % NAME)
    a = ap.parse_args()
    s, nv = gen(not a.nont, a.I8, a.nmin, a.nmax, a.nstep, a.stamps, a.pf, a.fixed, a.mix, a.xonly, a.fl)
    open(a.o, "w").write(s)
    print("NV", nv)
```

```python
import sys, argparse, struct

NAME = "standalone__paged_block_table_kv_pagedattention__sampling"
HDR = open('cdna_kernels/%s.s.ref' % NAME).read().split('\n')
HDR = [l for l in HDR if l.startswith(';') and '@launch' not in l and 'Override' not in l and 'grid=ceil' not in l]

def f2u(x): return struct.unpack('<I', struct.pack('<f', x))[0]

def gen(nt=True, I8=200, NMIN=16, NMAX=32, NSTEP=1, stamps=False, pf=False, fixedN=None, mix=0, xonly=None, fl=None, dbg=False):
    L = []
    e = L.append
    flags = " nt" if nt else ""
    if fl is not None: flags = " " + fl.replace(",", " ")
    R = 8
    FL = R * 16384
    MG = FL + 768
    LDS = MG + 2 * 4608
    def r(b, n): return "v[%d:%d]" % (b, b + n - 1)
    def sr(b, n=4): return "s[%d:%d]" % (b, b + n - 1)
    sK, sV, sBT, sQ, sOUT = 20, 24, 28, 20, 24
    sLens = 32
    sB, sH, sN, sLen, sT, sO0, sO1, sTmp, sTmp2, sSum, sTgt, sAcc, sDone, sLast, sC, sNeg, sFull, sNeed, sSlot, sCi = range(40, 60)
    sBH = 62
    ST = 64
    nst = [0]
    def stamp():
        if stamps:
            e("s_memrealtime s[%d:%d]" % (ST + 2 * nst[0], ST + 2 * nst[0] + 1)); nst[0] += 1
    def dump_stamps(role, vA, vB):
        if not stamps: return
        if dbg:
            uid = role if isinstance(role, int) else 1
            e("s_load_dwordx2 s[16:17], s[0:1], 48")
            e("s_waitcnt lgkmcnt(0)")
            e("s_not_b32 s%d, s%d" % (ST, ST))
            for k in range(nst[0]):
                e("v_writelane_b32 v%d, s%d, %d" % (vA, ST + 2 * k, k))
            e("v_mbcnt_lo_u32_b32 v%d, -1, 0" % vB)
            e("v_mbcnt_hi_u32_b32 v%d, -1, v%d" % (vB, vB))
            e("v_lshlrev_b32 v%d, 2, v%d" % (vB, vB))
            e("v_add_u32 v%d, %d, v%d" % (vB, 0 if uid == 0 else 24, vB))
            e("s_mov_b64 exec, 0x%x" % ((1 << nst[0]) - 1))
            e("global_atomic_umax v%d, v%d, s[16:17]" % (vB, vA))
            e("s_mov_b64 exec, -1")
            return
        e("s_load_dwordx2 s[16:17], s[0:1], 56")
        e("s_waitcnt lgkmcnt(0)")
        for k in range(nst[0]):
            e("v_writelane_b32 v%d, s%d, %d" % (vA, ST + 2 * k, k))
        e("s_lshl_b32 s18, s2, 8")
        role_off = role if isinstance(role, str) else str(role * 64)
        e("s_add_u32 s18, s18, %s" % role_off)
        e("v_mbcnt_lo_u32_b32 v%d, -1, 0" % vB)
        e("v_mbcnt_hi_u32_b32 v%d, -1, v%d" % (vB, vB))
        e("v_lshl_add_u32 v%d, v%d, 2, s18" % (vB, vB))
        e("s_mov_b64 exec, 0xffff")
        e("global_store_dword v%d, v%d, s[16:17]" % (vB, vA))
        e("s_mov_b64 exec, -1")

    for l in HDR: e(l)
    e("; @launch grid=(256,1,1) block=(192,1,1) lds=%d" % LDS)
    e('.amdgcn_target "amdgcn-amd-amdhsa--gfx950"')
    e(".text")
    e(".globl %s_kernel" % NAME)
    e(".p2align 8")
    e(".type %s_kernel,@function" % NAME)
    e("%s_kernel:" % NAME)
    stamp()
    e("s_cmp_ge_u32 s2, 256")
    e("s_cbranch_scc1 L_end")
    e("s_load_dwordx8 s[4:11], s[0:1], 0")
    e("s_load_dwordx4 s[12:15], s[0:1], 32")
    vC, vG, vLane = 1, 2, 3
    e("v_readfirstlane_b32 s3, v0")
    e("s_lshr_b32 s%d, s2, 5" % sB)
    if xonly is not None:
        e("s_and_b32 s%d, s2, 7" % sH)
        e("s_cmp_ge_u32 s%d, %d" % (sH, xonly))
        e("s_cbranch_scc1 L_end")
    if mix == 0:
        e("s_and_b32 s%d, s2, 31" % sH)
    elif mix == 1:
        e("s_add_u32 s%d, s2, s%d" % (sH, sB))
        e("s_and_b32 s%d, s%d, 7" % (sH, sH))
        e("s_and_b32 s%d, s2, 24" % sTmp)
        e("s_or_b32 s%d, s%d, s%d" % (sH, sH, sTmp))
    elif mix == 2:
        e("s_and_b32 s%d, s2, 7" % sH)
        e("s_lshl_b32 s%d, s%d, 2" % (sH, sH))
        e("s_bfe_u32 s%d, s2, 0x20003" % sTmp)
        e("s_or_b32 s%d, s%d, s%d" % (sH, sH, sTmp))
    elif mix == 3:
        e("s_add_u32 s%d, s2, s%d" % (sH, sB))
        e("s_and_b32 s%d, s%d, 7" % (sH, sH))
        e("s_lshl_b32 s%d, s%d, 2" % (sH, sH))
        e("s_bfe_u32 s%d, s2, 0x20003" % sTmp)
        e("s_or_b32 s%d, s%d, s%d" % (sH, sH, sTmp))
    e("s_lshl_b32 s%d, s%d, 5" % (sBH, sB))
    e("s_or_b32 s%d, s%d, s%d" % (sBH, sBH, sH))
    e("v_and_b32 v%d, 15, v0" % vC)
    e("v_bfe_u32 v%d, v0, 4, 2" % vG)
    e("v_and_b32 v%d, 63, v0" % vLane)
    e("s_cmp_lg_u32 s3, 0")
    e("s_cbranch_scc1 L_cons")
    vA, vBb, vBT, vT0, vT1, vF, vFA, vD, vDA, vOOB = 4, 8, 12, 14, 15, 16, 17, 18, 19, 20
    e("v_xor_b32 v%d, v%d, v%d" % (vT0, vC, vG))
    e("v_lshlrev_b32 v%d, 4, v%d" % (vT0, vT0))
    e("v_lshl_add_u32 v%d, v%d, 13, v%d" % (vA, vG, vT0))
    e("v_lshlrev_b32 v%d, 3, v%d" % (vT1, vLane))
    for i in range(1, 4):
        e("v_xor_b32 v%d, %d, v%d" % (vA + i, i * 64, vA))
        e("v_add_u32 v%d, %d, v%d" % (vA + i, i * 31744, vA + i))
    for i in range(4):
        e("v_mov_b32 v%d, v%d" % (vBb + i, vA + i))
    e("s_lshl_b32 s%d, s%d, 2" % (sTmp, sB))
    e("s_lshl_b32 s%d, s%d, 9" % (sTmp2, sB))
    e("s_mov_b32 s%d, 512" % (sBT + 2))
    e("s_mov_b32 s%d, 0x20000" % (sBT + 3))
    e("s_lshl_b32 s%d, s%d, 8" % (sO0, sH))
    e("s_sub_u32 s%d, 0x8080000, s%d" % (sK + 2, sO0))
    e("s_mov_b32 s%d, 0x20000" % (sK + 3))
    e("s_mov_b32 s%d, s%d" % (sV + 2, sK + 2))
    e("s_mov_b32 s%d, 0x20000" % (sV + 3))
    e("s_mov_b32 s%d, 0" % sT)
    e("s_waitcnt lgkmcnt(0)")
    stamp()
    e("s_add_u32 s%d, s10, s%d" % (sBT, sTmp2))
    e("s_addc_u32 s%d, s11, 0" % (sBT + 1))
    e("buffer_load_dwordx2 %s, v%d, %s, 0 offen" % (r(vBT, 2), vT1, sr(sBT)))
    e("s_load_dword s%d, s[12:13], s%d" % (sLen, sTmp))
    e("s_load_dwordx8 %s, s[12:13], 0" % sr(sLens, 8))
    e("s_add_u32 s%d, s6, s%d" % (sK, sO0))
    e("s_addc_u32 s%d, s7, 0" % (sK + 1))
    e("s_add_u32 s%d, s8, s%d" % (sV, sO0))
    e("s_addc_u32 s%d, s9, 0" % (sV + 1))
    e("v_lshlrev_b32 v%d, 2, v%d" % (vFA, vLane))
    e("v_add_u32 v%d, %d, v%d" % (vFA, FL, vFA))
    e("v_add_u32 v%d, %d, v%d" % (vDA, 512, vFA))
    e("s_waitcnt lgkmcnt(0)")
    e("s_sub_u32 s%d, s%d, 1" % (sLen, sLen))
    e("s_min_u32 s%d, s%d, 2047" % (sLen, sLen))
    e("s_lshr_b32 s%d, s%d, 5" % (sLast, sLen))
    e("s_add_u32 s%d, s%d, 1" % (sLen, sLen))
    e("s_waitcnt vmcnt(0)")
    stamp()
    e("v_lshlrev_b32 v%d, 17, v%d" % (vBT, vBT))
    e("v_lshlrev_b32 v%d, 17, v%d" % (vBT + 1, vBT + 1))
    e("L_U:")
    e("s_cmp_lg_u32 s%d, s%d" % (sT, sLast))
    e("s_cbranch_scc0 L_fix")
    e("L_U2:")
    e("v_readlane_b32 s%d, v%d, s%d" % (sO0, vBT, sT))
    e("v_readlane_b32 s%d, v%d, s%d" % (sO1, vBT + 1, sT))
    e("s_and_b32 s%d, s%d, %d" % (sTmp, sT, R - 1))
    e("s_lshl_b32 m0, s%d, 14" % sTmp)
    e("s_nop 2")
    def ld(srd, blk, i, vo):
        e("buffer_load_dwordx4 v%d, %s, s%d offen offset:%d%s lds" % (vo + i, sr(srd), sO0 + blk, i * 1024, flags))
    for u in range(4):
        if u: e("s_add_u32 m0, m0, 4096"); e("s_nop 0")
        for i in range(4):
            ld(sK if u < 2 else sV, u & 1, i, vBb if u & 1 else vA)
    e("s_cmp_lg_u32 s%d, 0" % sT)
    e("s_cbranch_scc1 L_drain")
    e("s_barrier")
    e("s_cmp_eq_u32 s%d, 0" % sLast)
    e("s_cbranch_scc1 L_drain")
    e("ds_read_b32 v%d, v%d" % (vD, vDA))
    e("s_mov_b32 s%d, 1" % sT)
    Ns = list(range(NMIN, NMAX + 1, NSTEP))
    if fixedN is None:
        e("s_mov_b32 s%d, 8" % sSum)
        for i in range(8):
            e("s_sub_u32 s%d, s%d, 1" % (sLens + i, sLens + i))
            e("s_min_u32 s%d, s%d, 2047" % (sLens + i, sLens + i))
            e("s_lshr_b32 s%d, s%d, 5" % (sLens + i, sLens + i))
            e("s_add_u32 s%d, s%d, s%d" % (sSum, sSum, sLens + i))
        e("s_add_u32 s%d, s%d, 1" % (sTgt, sLast))
        e("s_mul_i32 s%d, s%d, %d" % (sTgt, sTgt, I8))
        e("s_mul_i32 s%d, s%d, %d" % (sAcc, sSum, NMIN))
        if NSTEP > 1: e("s_mul_i32 s%d, s%d, %d" % (sSum, sSum, NSTEP))
        for N in Ns[:-1]:
            e("s_cmp_le_u32 s%d, s%d" % (sTgt, sAcc))
            e("s_cbranch_scc1 L_N%d" % N)
            e("s_add_u32 s%d, s%d, s%d" % (sAcc, sAcc, sSum))
        e("s_branch L_N%d" % Ns[-1])
    else:
        Ns = [fixedN]
    for N in Ns:
        ps = [p for p in range(16) if (p + 2 - N) % 8 == 0]
        v0 = 2 + (ps[0] + 2 - N) // 8 - 1
        e("L_N%d:" % N)
        e("v_mov_b32 v%d, %d" % (vF, v0))
        e("L_top%d:" % N)
        e("v_readlane_b32 s%d, v%d, s%d" % (sO0, vBT, sT))
        e("v_readlane_b32 s%d, v%d, s%d" % (sO1, vBT + 1, sT))
        e("s_sub_u32 s%d, s%d, %d" % (sTmp2, sT, R - 1))
        e("L_chk%d:" % N)
        e("s_waitcnt lgkmcnt(0)")
        e("v_readfirstlane_b32 s%d, v%d" % (sDone, vD))
        e("s_cmp_ge_i32 s%d, s%d" % (sDone, sTmp2))
        e("s_cbranch_scc1 L_ok%d" % N)
        e("ds_read_b32 v%d, v%d" % (vD, vDA))
        e("s_branch L_chk%d" % N)
        e("L_ok%d:" % N)
        e("s_cmp_eq_u32 s%d, s%d" % (sT, sLast))
        e("s_cbranch_scc1 L_fix")
        e("s_and_b32 s%d, s%d, %d" % (sTmp, sT, R - 1))
        e("s_lshl_b32 m0, s%d, 14" % sTmp)
        e("v_xor_b32 v%d, %d, v%d" % (vDA, 768, vDA))
        for p in range(16):
            u, i = p >> 2, p & 3
            if u and i == 0: e("s_add_u32 m0, m0, 4096"); e("s_nop 0")
            ld(sK if u < 2 else sV, u & 1, i, vA)
            if p == 8: e("ds_read_b32 v%d, v%d" % (vD, vDA))
            e("s_waitcnt vmcnt(%d)" % (N - 1))
            if p in ps:
                e("v_add_u32 v%d, 1, v%d" % (vF, vF))
                e("ds_write_b32 v%d, v%d" % (vFA, vF))
        e("s_add_u32 s%d, s%d, 1" % (sT, sT))
        e("s_branch L_top%d" % N)
    e("L_fix:")
    e("s_lshl_b32 s%d, s%d, 5" % (sTmp, sT))
    e("s_sub_u32 s%d, s%d, s%d" % (sTmp, sLen, sTmp))
    e("v_mov_b32 v%d, 0x40000000" % vOOB)
    for k in range(8):
        tok = (k & 3) * 4 + (k >> 2) * 16
        reg = (vA if k < 4 else vBb) + (k & 3)
        e("v_add_u32 v%d, %d, v%d" % (vT0, tok, vG))
        e("v_cmp_gt_u32 vcc, s%d, v%d" % (sTmp, vT0))
        e("s_nop 1")
        e("v_cndmask_b32 v%d, v%d, v%d, vcc" % (reg, vOOB, reg))
    e("s_branch L_U2")
    e("L_drain:")
    stamp()
    e("s_lshl_b32 s%d, s%d, 1" % (sTmp, sLast))
    hi = (NMAX + 16 + 7) // 8
    hi = min(hi, 7)
    e("s_sub_u32 s%d, s%d, %d" % (sTmp, sTmp, hi - 2))
    e("v_mov_b32 v%d, s%d" % (vF, sTmp))
    for k in range(hi - 1, -1, -1):
        e("v_add_u32 v%d, 1, v%d" % (vF, vF))
        e("s_waitcnt vmcnt(%d)" % (8 * k))
        e("ds_write_b32 v%d, v%d" % (vFA, vF))
    stamp()
    dump_stamps(0, vT0, vT1)
    e("s_endpgm")
    nst[0] = 1
    nv = 4
    def va(n, align=1):
        nonlocal nv
        nv = (nv + align - 1) // align * align
        x = nv; nv += n; return x
    vT0 = va(1); vT1 = va(1); vT2 = va(1); vT3 = va(1)
    vKb = va(4); vVb = va(4); vKa = va(4); vVa = va(4)
    vFA = va(1); vDA = va(1); vF = va(1); vM = va(1); vLs = va(1); vAl = va(2, 2)
    vQ = va(16, 4); vS = va(8, 4); vP = va(4, 4); vO = va(32, 4); vKf = va(32, 4); vVt = va(32, 4)
    NV = nv
    e("L_cons:")
    e("s_lshr_b32 s%d, s3, 7" % sCi)
    e("v_lshlrev_b32 v%d, 2, v%d" % (vFA, vLane))
    e("v_add_u32 v%d, %d, v%d" % (vFA, FL, vFA))
    e("s_lshl_b32 s%d, s%d, 8" % (sTmp, sCi))
    e("s_add_u32 s%d, s%d, 256" % (sTmp, sTmp))
    e("v_add_u32 v%d, s%d, v%d" % (vDA, sTmp, vFA))
    e("v_mov_b32 v%d, 0" % vF)
    e("ds_write_b32 v%d, v%d" % (vFA, vF))
    e("ds_write_b32 v%d, v%d" % (vDA, vF))
    e("v_lshlrev_b32 v%d, 4, v%d" % (vT0, vG))
    e("v_lshl_add_u32 v%d, v%d, 8, v%d" % (vT1, vC, vT0))
    e("s_lshl_b32 s%d, s%d, 2" % (sTmp, sB))
    e("s_lshl_b32 s%d, s%d, 12" % (sTmp2, sBH))
    e("s_mov_b32 s%d, 4096" % (sQ + 2))
    e("s_mov_b32 s%d, 0x20000" % (sQ + 3))
    e("s_waitcnt lgkmcnt(0)")
    e("s_barrier")
    e("s_load_dword s%d, s[12:13], s%d" % (sLen, sTmp))
    e("s_add_u32 s%d, s4, s%d" % (sQ, sTmp2))
    e("s_addc_u32 s%d, s5, 0" % (sQ + 1))
    for j in range(4):
        e("buffer_load_dwordx4 %s, v%d, %s, 0 offen offset:%d" % (r(vQ + 4 * j, 4), vT1, sr(sQ), j * 64))
    if pf:
        e("s_getpc_b64 s[60:61]")
        e("L_pc:")
        e("s_sub_u32 s60, s60, L_pc-%s_kernel" % NAME)
        e("s_subb_u32 s61, s61, 0")
        e("v_lshlrev_b32 v%d, 7, v%d" % (vT2, vLane))
        e("v_min_u32 v%d, L_end-%s_kernel, v%d" % (vT2, NAME, vT2))
        e("global_load_dword v%d, v%d, s[60:61]" % (vT3, vT2))
    e("s_add_u32 s%d, s14, s%d" % (sOUT, sTmp2))
    e("s_addc_u32 s%d, s15, 0" % (sOUT + 1))
    e("s_mov_b32 s%d, 4096" % (sOUT + 2))
    e("s_mov_b32 s%d, 0x20000" % (sOUT + 3))
    e("v_xor_b32 v%d, v%d, v%d" % (vT0, vG, vC))
    e("v_lshlrev_b32 v%d, 4, v%d" % (vT0, vT0))
    e("v_lshl_add_u32 v%d, v%d, 8, v%d" % (vKb, vC, vT0))
    for j in range(1, 4):
        e("v_xor_b32 v%d, %d, v%d" % (vKb + j, j * 64, vKb))
    e("v_lshrrev_b32 v%d, 2, v%d" % (vT0, vLane))
    e("v_and_b32 v%d, 3, v%d" % (vT2 if not pf else vVa, vLane))
    tt = vT2 if not pf else vVa
    e("v_lshlrev_b32 v%d, 2, v%d" % (tt, tt))
    e("v_xor_b32 v%d, v%d, v%d" % (tt, tt, vT0))
    e("v_lshlrev_b32 v%d, 4, v%d" % (tt, tt))
    e("v_lshl_add_u32 v%d, v%d, 8, v%d" % (vVb, vT0, tt))
    e("s_lshl_b32 s%d, s%d, 5" % (sTmp, sCi))
    e("v_xor_b32 v%d, s%d, v%d" % (vVb, sTmp, vVb))
    for j in range(1, 4):
        e("v_xor_b32 v%d, %d, v%d" % (vVb + j, j * 16, vVb))
    e("s_mov_b32 s%d, 0xf149f2ca" % sNeg)
    e("v_mov_b32 v%d, s%d" % (vM, sNeg))
    e("v_mov_b32 v%d, 0" % vLs)
    for i in range(32):
        e("v_mov_b32 v%d, 0" % (vO + i))
    e("s_mov_b32 s%d, 0" % sFull)
    e("s_waitcnt lgkmcnt(0)")
    e("s_cmp_lt_i32 s%d, 1" % sLen)
    e("s_cselect_b32 s%d, 0, 0x%x" % (sC, f2u((128 ** -0.5) * 1.4426950408889634)))
    e("s_sub_u32 s%d, s%d, 1" % (sLen, sLen))
    e("s_min_u32 s%d, s%d, 2047" % (sLen, sLen))
    e("s_lshr_b32 s%d, s%d, 5" % (sLast, sLen))
    e("s_add_u32 s%d, s%d, 1" % (sLen, sLen))
    e("s_mov_b32 s%d, s%d" % (sT, sCi))
    e("s_waitcnt vmcnt(0)")
    stamp()
    e("s_cmp_gt_u32 s%d, s%d" % (sT, sLast))
    e("s_cbranch_scc1 L_epi")
    def poll(tag):
        e("L_poll%s:" % tag)
        e("s_cmp_ge_i32 s%d, s%d" % (sFull, sNeed))
        e("s_cbranch_scc1 L_go%s" % tag)
        e("ds_read_b32 v%d, v%d" % (vF, vFA))
        e("s_waitcnt lgkmcnt(0)")
        e("v_readfirstlane_b32 s%d, v%d" % (sFull, vF))
        e("s_branch L_poll%s" % tag)
        e("L_go%s:" % tag)
    e("L_loop:")
    e("s_lshl_b32 s%d, s%d, 1" % (sNeed, sT))
    e("s_add_u32 s%d, s%d, 1" % (sNeed, sNeed))
    e("s_and_b32 s%d, s%d, %d" % (sSlot, sT, R - 1))
    e("s_lshl_b32 s%d, s%d, 14" % (sSlot, sSlot))
    for j in range(4):
        e("v_or_b32 v%d, s%d, v%d" % (vKa + j, sSlot, vKb + j))
    for j in range(4):
        e("v_or_b32 v%d, s%d, v%d" % (vVa + j, sSlot, vVb + j))
    poll("K")
    if stamps:
        e("s_cmp_gt_u32 s%d, 1" % sT)
        e("s_cbranch_scc1 L_nost")
        stamp()
        e("s_waitcnt lgkmcnt(0)")
        e("L_nost:")
    for j in range(4):
        for blk in range(2):
            e("ds_read_b128 %s, v%d offset:%d" % (r(vKf + (j * 2 + blk) * 4, 4), vKa + j, blk * 4096))
    e("s_add_u32 s%d, s%d, 1" % (sNeed, sNeed))
    for j in range(4):
        e("s_waitcnt lgkmcnt(%d)" % (6 - 2 * j))
        for blk in range(2):
            c = "0" if j == 0 else r(vS + blk * 4, 4)
            e("v_mfma_f32_16x16x32_bf16 %s, %s, %s, %s" % (r(vS + blk * 4, 4), r(vKf + (j * 2 + blk) * 4, 4), r(vQ + 4 * j, 4), c))
    e("s_cmp_eq_u32 s%d, s%d" % (sT, sLast))
    e("s_nop 6")
    e("s_cbranch_scc1 L_mask")
    e("L_nomask:")
    e("v_max3_f32 v%d, v%d, v%d, v%d" % (vT0, vS, vS + 1, vS + 2))
    e("v_max3_f32 v%d, v%d, v%d, v%d" % (vT1, vS + 4, vS + 5, vS + 6))
    e("v_max3_f32 v%d, v%d, v%d, v%d" % (vT0, vT0, vS + 3, vS + 7))
    e("v_max_f32 v%d, v%d, v%d" % (vT0, vT0, vT1))
    e("v_mov_b32 v%d, v%d" % (vT1, vT0))
    e("s_nop 1")
    e("v_permlane32_swap_b32 v%d, v%d" % (vT0, vT1))
    e("v_max_f32 v%d, v%d, v%d" % (vT0, vT0, vT1))
    e("v_mov_b32 v%d, v%d" % (vT1, vT0))
    e("s_nop 1")
    e("v_permlane16_swap_b32 v%d, v%d" % (vT0, vT1))
    e("v_max_f32 v%d, v%d, v%d" % (vT0, vT0, vT1))
    e("v_mul_f32 v%d, s%d, v%d" % (vT0, sC, vT0))
    e("v_max_f32 v%d, v%d, v%d" % (vT0, vT0, vM))
    e("v_sub_f32 v%d, v%d, v%d" % (vT1, vM, vT0))
    e("v_exp_f32 v%d, v%d" % (vAl, vT1))
    e("v_mov_b32 v%d, v%d" % (vM, vT0))
    for i in range(8):
        e("v_fma_f32 v%d, v%d, s%d, -v%d" % (vS + i, vS + i, sC, vM))
    for i in range(8):
        e("v_exp_f32 v%d, v%d" % (vS + i, vS + i))
    e("v_mul_f32 v%d, v%d, v%d" % (vLs, vLs, vAl))
    for i in range(0, 32, 2):
        e("v_pk_mul_f32 %s, %s, %s op_sel_hi:[1,0]" % (r(vO + i, 2), r(vO + i, 2), r(vAl, 2)))
    for i in range(4):
        e("v_cvt_pk_bf16_f32 v%d, v%d, v%d" % (vP + i, vS + 2 * i, vS + 2 * i + 1))
    poll("V")
    def vread(dd):
        for blk in range(2):
            e("ds_read_b64_tr_b16 %s, v%d offset:%d" % (r(vVt + dd * 4 + blk * 2, 2), vVa + (dd >> 1), 8192 + blk * 4096 + (dd & 1) * 8))
    for dd in range(7): vread(dd)
    e("v_add_f32 v%d, v%d, v%d" % (vT0, vS, vS + 1))
    e("v_add_f32 v%d, v%d, v%d" % (vT1, vS + 2, vS + 3))
    e("v_add_f32 v%d, v%d, v%d" % (vT2, vS + 4, vS + 5))
    e("v_add_f32 v%d, v%d, v%d" % (vT3, vS + 6, vS + 7))
    e("v_add_f32 v%d, v%d, v%d" % (vT0, vT0, vT1))
    e("v_add_f32 v%d, v%d, v%d" % (vT2, vT2, vT3))
    e("s_add_u32 s%d, s%d, 1" % (sTmp, sT))
    e("v_add_f32 v%d, v%d, v%d" % (vT0, vT0, vT2))
    e("v_mov_b32 v%d, s%d" % (vF, sTmp))
    e("v_add_f32 v%d, v%d, v%d" % (vLs, vLs, vT0))
    for dd in range(8):
        e("s_waitcnt lgkmcnt(%d)" % (12 if dd == 0 else 14 - 2 * dd))
        if dd == 7: e("ds_write_b32 v%d, v%d" % (vDA, vF))
        e("v_mfma_f32_16x16x32_bf16 %s, %s, %s, %s" % (r(vO + dd * 4, 4), r(vVt + dd * 4, 4), r(vP, 4), r(vO + dd * 4, 4)))
        if dd == 0: vread(7)
    e("s_add_u32 s%d, s%d, 2" % (sT, sT))
    e("s_cmp_le_u32 s%d, s%d" % (sT, sLast))
    e("s_cbranch_scc1 L_loop")
    e("L_epi:")
    stamp()
    e("v_mov_b32 v%d, v%d" % (vT1, vLs))
    e("s_mul_i32 s%d, s%d, 4608" % (sTmp, sCi))
    e("s_add_u32 s%d, s%d, %d" % (sTmp, sTmp, MG))
    e("v_permlane32_swap_b32 v%d, v%d" % (vLs, vT1))
    e("v_add_f32 v%d, v%d, v%d" % (vLs, vLs, vT1))
    e("v_mov_b32 v%d, v%d" % (vT1, vLs))
    e("v_lshl_add_u32 v%d, v%d, 4, s%d" % (vT2, vLane, sTmp))
    e("v_lshl_add_u32 v%d, v%d, 3, s%d" % (vT3, vLane, sTmp))
    e("v_permlane16_swap_b32 v%d, v%d" % (vLs, vT1))
    e("v_add_f32 v%d, v%d, v%d" % (vAl + 1, vLs, vT1))
    e("v_mov_b32 v%d, v%d" % (vAl, vM))
    e("ds_write_b64 v%d, %s offset:4096" % (vT3, r(vAl, 2)))
    for i in range(4):
        e("ds_write_b128 v%d, %s offset:%d" % (vT2, r(vO + 16 + 4 * i, 4), i * 1024))
    e("s_sub_u32 s%d, %d, s%d" % (sTmp, 2 * MG + 4608, sTmp))
    e("v_lshl_add_u32 v%d, v%d, 4, s%d" % (vT2, vLane, sTmp))
    e("v_lshl_add_u32 v%d, v%d, 3, s%d" % (vT3, vLane, sTmp))
    e("v_lshlrev_b32 v%d, 6, v%d" % (vT0, vG))
    e("v_lshl_add_u32 v%d, v%d, 8, v%d" % (vT0, vC, vT0))
    e("s_lshl_b32 s%d, s%d, 5" % (sTmp, sCi))
    e("s_waitcnt lgkmcnt(0)")
    e("s_barrier")
    e("ds_read_b64 %s, v%d offset:4096" % (r(vS, 2), vT3))
    for i in range(4):
        e("ds_read_b128 %s, v%d offset:%d" % (r(vVt + 4 * i, 4), vT2, i * 1024))
    e("s_waitcnt lgkmcnt(4)")
    e("v_max_f32 v%d, v%d, v%d" % (vT1, vM, vS))
    e("v_sub_f32 v%d, v%d, v%d" % (vS + 2, vM, vT1))
    e("v_sub_f32 v%d, v%d, v%d" % (vS + 4, vS, vT1))
    e("v_exp_f32 v%d, v%d" % (vS + 2, vS + 2))
    e("v_exp_f32 v%d, v%d" % (vS + 4, vS + 4))
    e("s_nop 0")
    e("v_mul_f32 v%d, v%d, v%d" % (vT1, vS + 2, vAl + 1))
    e("v_fmac_f32 v%d, v%d, v%d" % (vT1, vS + 4, vS + 1))
    e("v_rcp_f32 v%d, v%d" % (vT1, vT1))
    e("s_nop 0")
    e("v_mul_f32 v%d, v%d, v%d" % (vS + 2, vS + 2, vT1))
    e("v_mul_f32 v%d, v%d, v%d" % (vS + 4, vS + 4, vT1))
    for i in range(0, 16, 2):
        e("v_pk_mul_f32 %s, %s, %s op_sel_hi:[1,0]" % (r(vO + i, 2), r(vO + i, 2), r(vS + 2, 2)))
    e("s_waitcnt lgkmcnt(0)")
    for i in range(0, 16, 2):
        e("v_pk_fma_f32 %s, %s, %s, %s op_sel_hi:[1,0,1]" % (r(vO + i, 2), r(vVt + i, 2), r(vS + 4, 2), r(vO + i, 2)))
    for i in range(8):
        e("v_cvt_pk_bf16_f32 v%d, v%d, v%d" % (vKf + i, vO + 2 * i, vO + 2 * i + 1))
    e("buffer_store_dwordx4 %s, v%d, %s, s%d offen" % (r(vKf, 4), vT0, sr(sOUT), sTmp))
    e("buffer_store_dwordx4 %s, v%d, %s, s%d offen offset:16" % (r(vKf + 4, 4), vT0, sr(sOUT), sTmp))
    if stamps:
        stamp()
        e("s_waitcnt vmcnt(0)")
        stamp()
        e("s_lshl_b32 s19, s%d, 6" % sCi)
        e("s_add_u32 s19, s19, 64")
        dump_stamps("s19", vT2, vT3)
    e("s_endpgm")
    e("L_mask:")
    e("s_lshl_b32 s%d, s%d, 5" % (sTmp, sT))
    e("s_sub_u32 s%d, s%d, s%d" % (sTmp, sLen, sTmp))
    e("v_lshlrev_b32 v%d, 2, v%d" % (vT0, vG))
    e("v_mov_b32 v%d, s%d" % (vT3, sNeg))
    for i in range(8):
        tok = i if i < 4 else 16 + i - 4
        e("v_add_u32 v%d, %d, v%d" % (vT1, tok, vT0))
        e("v_cmp_gt_u32 vcc, s%d, v%d" % (sTmp, vT1))
        e("s_nop 1")
        e("v_cndmask_b32 v%d, v%d, v%d, vcc" % (vS + i, vT3, vS + i))
    e("s_branch L_nomask")
    e("L_end:")
    e("s_endpgm")
    e('.section .rodata,"a"')
    e(".p2align 6")
    e(".amdhsa_kernel %s_kernel" % NAME)
    e("  .amdhsa_next_free_vgpr %d" % NV)
    e("  .amdhsa_next_free_sgpr 96")
    e("  .amdhsa_accum_offset %d" % ((NV + 3) // 4 * 4))
    e("  .amdhsa_group_segment_fixed_size 0")
    e("  .amdhsa_kernarg_size 64")
    e("  .amdhsa_user_sgpr_count 2")
    e("  .amdhsa_user_sgpr_kernarg_segment_ptr 1")
    e("  .amdhsa_system_sgpr_workgroup_id_x 1")
    e(".end_amdhsa_kernel")
    return "\n".join(L) + "\n", NV

if __name__ == "__main__":
    ap = argparse.ArgumentParser()
    ap.add_argument("--nont", action="store_true")
    ap.add_argument("--I8", type=int, default=200)
    ap.add_argument("--nmin", type=int, default=16)
    ap.add_argument("--nmax", type=int, default=32)
    ap.add_argument("--nstep", type=int, default=1)
    ap.add_argument("--fixed", type=int, default=None)
    ap.add_argument("--stamps", action="store_true")
    ap.add_argument("--pf", action="store_true")
    ap.add_argument("--mix", type=int, default=0)
    ap.add_argument("--fl", default=None)
    ap.add_argument("--dbg", action="store_true")
    ap.add_argument("--xonly", type=int, default=None)
    ap.add_argument("-o", default="cdna_kernels/%s.s" % NAME)
    a = ap.parse_args()
    s, nv = gen(not a.nont, a.I8, a.nmin, a.nmax, a.nstep, a.stamps, a.pf, a.fixed, a.mix, a.xonly, a.fl, a.dbg)
    open(a.o, "w").write(s)
    print("NV", nv)
```

```python
import sys, argparse

NAME = "standalone__paged_block_table_kv_pagedattention__sampling"
HDR = open('cdna_kernels/%s.s.ref' % NAME).read().split('\n')
HDR = [l for l in HDR if l.startswith(';') and '@launch' not in l and 'Override' not in l and 'grid=ceil' not in l]

def gen(W=8, P=2, nt=True, lds=98304, compute=True, kcoal=False, bal=False, act=None):
    L = []
    e = L.append
    flags = " nt" if nt else ""
    nv = 1
    def va(n, align=1):
        nonlocal nv
        nv = (nv + align - 1) // align * align
        r = nv; nv += n; return r
    vLane = va(1); vC = va(1); vG = va(1); vT0 = va(1); vT1 = va(1); vT2 = va(1); vT3 = va(1)
    vKoff = va(2); vVoff = va(8)
    vBT = va(2, 2)
    vM = va(1); vLs = va(1); vAl = va(2, 2)
    vQ = va(16, 4)
    vS = va(8, 4)
    vP = va(4, 4)
    vO = va(32, 4)
    vVt = va(32, 4)
    vK = [va(32, 4) for _ in range(P)]
    vV = [va(32, 4) for _ in range(P)]
    NV = nv
    assert NV <= 512
    sK, sV, sQ, sBT, sOUT = 16, 20, 24, 28, 32
    sB, sH, sW, sLen, sNT, sC, sT, sTL, sO0, sO1, sSelLo, sSelHi, sTmp, sTmp2, sNeg, sStr, sC8 = range(36, 53)
    def r(b, n): return "v[%d:%d]" % (b, b + n - 1)
    def sr(b, n=4): return "s[%d:%d]" % (b, b + n - 1)

    for l in HDR: e(l)
    e("; @launch grid=(256,1,1) block=(%d,1,1) lds=%d" % (W * 64, lds))
    e('.amdgcn_target "amdgcn-amd-amdhsa--gfx950"')
    e(".text")
    e(".globl %s_kernel" % NAME)
    e(".p2align 8")
    e(".type %s_kernel,@function" % NAME)
    e("%s_kernel:" % NAME)
    e("s_cmp_ge_u32 s2, 256")
    e("s_cbranch_scc1 L_end")
    e("s_load_dwordx8 s[4:11], s[0:1], 0")
    e("s_load_dwordx4 s[12:15], s[0:1], 32")
    e("v_lshrrev_b32 v%d, 6, v0" % vT0)
    e("v_and_b32 v%d, 63, v0" % vLane)
    e("v_readfirstlane_b32 s%d, v%d" % (sW, vT0))
    e("v_and_b32 v%d, 15, v0" % vC)
    e("v_bfe_u32 v%d, v0, 4, 2" % vG)
    e("s_lshr_b32 s%d, s2, 5" % sB)
    e("s_and_b32 s%d, s2, 31" % sH)
    e("v_lshlrev_b32 v%d, 4, v%d" % (vT0, vG))
    e("v_lshl_add_u32 v%d, v%d, 13, v%d" % (vKoff, vC, vT0))
    e("v_mov_b32 v%d, v%d" % (vKoff + 1, vKoff))
    e("v_lshl_add_u32 v%d, v%d, 8, v%d" % (vT1, vC, vT0))
    e("v_lshlrev_b32 v%d, 4, v%d" % (vT0, vC))
    e("v_lshl_add_u32 v%d, v%d, 15, v%d" % (vVoff, vG, vT0))
    for i in range(1, 4):
        e("v_add_u32 v%d, 0x%x, v%d" % (vVoff + i, i << 13, vVoff))
    for i in range(4):
        e("v_mov_b32 v%d, v%d" % (vVoff + 4 + i, vVoff + i))
    e("v_lshlrev_b32 v%d, 3, v%d" % (vT2, vLane))
    e("s_lshl_b32 s%d, s%d, 2" % (sTmp, sB))
    e("s_lshl_b32 s%d, s%d, 9" % (sTmp2, sB))
    e("s_mov_b32 s%d, 512" % (sBT + 2))
    e("s_mov_b32 s%d, 0x20000" % (sBT + 3))
    e("s_mov_b32 s%d, 4096" % (sQ + 2))
    e("s_mov_b32 s%d, 0x20000" % (sQ + 3))
    e("s_waitcnt lgkmcnt(0)")
    e("s_load_dword s%d, s[12:13], s%d" % (sLen, sTmp))
    if bal: e("s_load_dwordx8 s[56:63], s[12:13], 0")
    e("s_add_u32 s%d, s10, s%d" % (sBT, sTmp2))
    e("s_addc_u32 s%d, s11, 0" % (sBT + 1))
    e("buffer_load_dwordx2 %s, v%d, %s, 0 offen" % (r(vBT, 2), vT2, sr(sBT)))
    e("s_lshl_b32 s%d, s2, 12" % sTmp2)
    e("s_add_u32 s%d, s4, s%d" % (sQ, sTmp2))
    e("s_addc_u32 s%d, s5, 0" % (sQ + 1))
    for j in range(4):
        e("buffer_load_dwordx4 %s, v%d, %s, 0 offen offset:%d" % (r(vQ + 4 * j, 4), vT1, sr(sQ), j * 64))
    e("s_add_u32 s%d, s14, s%d" % (sOUT, sTmp2))
    e("s_addc_u32 s%d, s15, 0" % (sOUT + 1))
    e("s_mov_b32 s%d, 4096" % (sOUT + 2))
    e("s_mov_b32 s%d, 0x20000" % (sOUT + 3))
    e("s_lshl_b32 s%d, s%d, 8" % (sTmp, sH))
    e("s_add_u32 s%d, s6, s%d" % (sK, sTmp))
    e("s_addc_u32 s%d, s7, 0" % (sK + 1))
    e("s_sub_u32 s%d, 0x8080000, s%d" % (sK + 2, sTmp))
    e("s_mov_b32 s%d, 0x20000" % (sK + 3))
    e("s_add_u32 s%d, s8, s%d" % (sV, sTmp))
    e("s_addc_u32 s%d, s9, 0" % (sV + 1))
    e("s_sub_u32 s%d, 0x8080000, s%d" % (sV + 2, sTmp))
    e("s_mov_b32 s%d, 0x20000" % (sV + 3))
    e("s_mov_b32 s%d, 0x05040100" % sSelLo)
    e("s_mov_b32 s%d, 0x07060302" % sSelHi)
    e("s_mov_b32 s%d, 0xf149f2ca" % sNeg)
    e("v_mov_b32 v%d, s%d" % (vM, sNeg))
    e("v_mov_b32 v%d, 0" % vLs)
    for i in range(32):
        e("v_mov_b32 v%d, 0" % (vO + i))
    e("s_waitcnt lgkmcnt(0)")
    import struct
    c0 = struct.unpack('<I', struct.pack('<f', (128 ** -0.5) * 1.4426950408889634))[0]
    e("s_cmp_lt_i32 s%d, 1" % sLen)
    e("s_cselect_b32 s%d, 0, 0x%x" % (sC, c0))
    e("s_cselect_b32 s%d, 2048, s%d" % (sLen, sLen))
    e("s_min_u32 s%d, s%d, 2048" % (sLen, sLen))
    e("s_add_u32 s%d, s%d, 31" % (sNT, sLen))
    e("s_lshr_b32 s%d, s%d, 5" % (sNT, sNT))
    e("s_mov_b32 s%d, %d" % (sStr, act or W))
    if act and not bal:
        e("s_cmp_ge_u32 s%d, s%d" % (sW, sStr))
        e("s_cbranch_scc1 L_epi")
    WB = act or W
    if bal:
        for i in range(8): e("s_sub_u32 s%d, s%d, 1" % (56+i, 56+i))
        for i in range(1,8): e("s_max_u32 s56, s56, s%d" % (56+i))
        e("s_min_u32 s56, s56, 2047")
        e("s_lshr_b32 s56, s56, 5")
        e("s_mul_i32 s56, s56, %d" % (-(-65536 // WB)))
        e("s_lshr_b32 s56, s56, 16")
        e("s_add_u32 s%d, s56, 1" % sC8)
        e("s_mov_b32 s%d, 1" % sStr)
        e("s_mov_b32 s%d, s%d" % (sTmp, sC8))
        for k in range(1, WB):
            e("s_cmp_gt_u32 s%d, s%d" % (sNT, sTmp))
            e("s_addc_u32 s%d, s%d, 0" % (sStr, sStr))
            e("s_add_u32 s%d, s%d, s%d" % (sTmp, sTmp, sC8))
        e("s_cmp_ge_u32 s%d, s%d" % (sW, sStr))
        e("s_cbranch_scc1 L_epi")
    e("s_mov_b32 s%d, s%d" % (sT, sW))
    e("s_mov_b32 s%d, s%d" % (sTL, sW))
    e("s_waitcnt vmcnt(4)")
    e("v_lshlrev_b32 v%d, 17, v%d" % (vBT, vBT))
    e("v_lshlrev_b32 v%d, 17, v%d" % (vBT + 1, vBT + 1))

    uid = [0]
    def fix_and_lanes():
        uid[0] += 1
        u = uid[0]
        e("s_lshl_b32 s%d, s%d, 5" % (sTmp, sTL))
        e("s_add_u32 s%d, s%d, 32" % (sTmp2, sTmp))
        e("s_cmp_le_u32 s%d, s%d" % (sTmp2, sLen))
        e("s_cbranch_scc1 L_nofix%d" % u)
        e("s_sub_i32 s%d, s%d, s%d" % (sTmp, sLen, sTmp))
        e("v_mov_b32 v%d, 0x40000000" % vT3)
        e("v_cmp_gt_i32 vcc, s%d, v%d" % (sTmp, vC))
        e("v_add_u32 v%d, 16, v%d" % (vT0, vC))
        e("s_nop 0")
        e("v_cndmask_b32 v%d, v%d, v%d, vcc" % (vKoff, vT3, vKoff))
        e("v_cmp_gt_i32 vcc, s%d, v%d" % (sTmp, vT0))
        e("v_lshlrev_b32 v%d, 2, v%d" % (vT0, vG))
        e("s_nop 0")
        e("v_cndmask_b32 v%d, v%d, v%d, vcc" % (vKoff + 1, vT3, vKoff + 1))
        for i in range(8):
            tok = i if i < 4 else 16 + i - 4
            e("v_add_u32 v%d, %d, v%d" % (vT1, tok, vT0))
            e("v_cmp_gt_i32 vcc, s%d, v%d" % (sTmp, vT1))
            e("s_nop 1")
            e("v_cndmask_b32 v%d, v%d, v%d, vcc" % (vVoff + i, vT3, vVoff + i))
        e("L_nofix%d:" % u)
        e("v_readlane_b32 s%d, v%d, s%d" % (sO0, vBT, sTL))
        e("v_readlane_b32 s%d, v%d, s%d" % (sO1, vBT + 1, sTL))
    def loadK(p):
        if kcoal:
            for i in range(8):
                e("buffer_load_dwordx4 %s, v%d, %s, s%d offen%s" % (r(vK[p] + i * 4, 4), vVoff + i, sr(sK), sO0 + (i >> 2), flags))
            return
        for blk in range(2):
            for j in range(4):
                e("buffer_load_dwordx4 %s, v%d, %s, s%d offen offset:%d%s" % (r(vK[p] + blk * 16 + j * 4, 4), vKoff + blk, sr(sK), sO0 + blk, j * 64, flags))
    def loadV(p):
        for i in range(8):
            e("buffer_load_dwordx4 %s, v%d, %s, s%d offen%s" % (r(vV[p] + i * 4, 4), vVoff + i, sr(sV), sO0 + (i >> 2), flags))

    e("s_nop 0")
    for p in range(P):
        fix_and_lanes()
        e("s_add_u32 s%d, s%d, s%d" % (sTL, sTL, sStr))
        e("s_nop 3")
        loadK(p); loadV(p)
    e("s_cmp_ge_u32 s%d, s%d" % (sT, sNT))
    e("s_cbranch_scc1 L_epi")
    e("L_loop:")
    NW = 16 * P - 8
    for p in range(P):
        fix_and_lanes()
        e("s_add_u32 s%d, s%d, s%d" % (sTL, sTL, sStr))
        e("s_waitcnt vmcnt(%d)" % NW)
        for j in range(4):
            for blk in range(2):
                c = "0" if j == 0 else r(vS + blk * 4, 4)
                e("v_mfma_f32_16x16x32_bf16 %s, %s, %s, %s" % (r(vS + blk * 4, 4), r(vK[p] + blk * 16 + j * 4, 4), r(vQ + 4 * j, 4), c))
        loadK(p)
        uid[0] += 1; u = uid[0]
        e("s_lshl_b32 s%d, s%d, 5" % (sTmp, sT))
        e("s_add_u32 s%d, s%d, 32" % (sTmp2, sTmp))
        e("s_cmp_le_u32 s%d, s%d" % (sTmp2, sLen))
        e("s_cbranch_scc1 L_nomask%d" % u)
        e("s_sub_i32 s%d, s%d, s%d" % (sTmp, sLen, sTmp))
        e("v_lshlrev_b32 v%d, 2, v%d" % (vT0, vG))
        e("v_mov_b32 v%d, s%d" % (vT3, sNeg))
        for i in range(8):
            tok = i if i < 4 else 16 + i - 4
            e("v_add_u32 v%d, %d, v%d" % (vT1, tok, vT0))
            e("v_cmp_gt_i32 vcc, s%d, v%d" % (sTmp, vT1))
            e("s_nop 1")
            e("v_cndmask_b32 v%d, v%d, v%d, vcc" % (vS + i, vT3, vS + i))
        e("L_nomask%d:" % u)
        e("v_max3_f32 v%d, v%d, v%d, v%d" % (vT0, vS, vS + 1, vS + 2))
        e("v_max3_f32 v%d, v%d, v%d, v%d" % (vT1, vS + 3, vS + 4, vS + 5))
        e("v_max3_f32 v%d, v%d, v%d, v%d" % (vT0, vT0, vS + 6, vS + 7))
        e("v_max_f32 v%d, v%d, v%d" % (vT0, vT0, vT1))
        e("v_mov_b32 v%d, v%d" % (vT1, vT0))
        e("s_nop 1")
        e("v_permlane32_swap_b32 v%d, v%d" % (vT0, vT1))
        e("v_max_f32 v%d, v%d, v%d" % (vT0, vT0, vT1))
        e("v_mov_b32 v%d, v%d" % (vT1, vT0))
        e("s_nop 1")
        e("v_permlane16_swap_b32 v%d, v%d" % (vT0, vT1))
        e("v_max_f32 v%d, v%d, v%d" % (vT0, vT0, vT1))
        e("v_mul_f32 v%d, s%d, v%d" % (vT0, sC, vT0))
        e("v_max_f32 v%d, v%d, v%d" % (vT0, vT0, vM))
        e("v_sub_f32 v%d, v%d, v%d" % (vT1, vM, vT0))
        e("v_exp_f32 v%d, v%d" % (vAl, vT1))
        e("v_mov_b32 v%d, v%d" % (vM, vT0))
        for i in range(8):
            e("v_fma_f32 v%d, v%d, s%d, -v%d" % (vS + i, vS + i, sC, vM))
        for i in range(8):
            e("v_exp_f32 v%d, v%d" % (vS + i, vS + i))
        e("v_mul_f32 v%d, v%d, v%d" % (vLs, vLs, vAl))
        for i in range(0, 32, 2):
            e("v_pk_mul_f32 %s, %s, %s op_sel_hi:[1,0]" % (r(vO + i, 2), r(vO + i, 2), r(vAl, 2)))
        e("v_add_f32 v%d, v%d, v%d" % (vT0, vS, vS + 1))
        e("v_add_f32 v%d, v%d, v%d" % (vT1, vS + 2, vS + 3))
        e("v_add_f32 v%d, v%d, v%d" % (vT2, vS + 4, vS + 5))
        e("v_add_f32 v%d, v%d, v%d" % (vT3, vS + 6, vS + 7))
        for i in range(4):
            e("v_cvt_pk_bf16_f32 v%d, v%d, v%d" % (vP + i, vS + 2 * i, vS + 2 * i + 1))
        e("v_add_f32 v%d, v%d, v%d" % (vT0, vT0, vT1))
        e("v_add_f32 v%d, v%d, v%d" % (vT2, vT2, vT3))
        e("v_add_f32 v%d, v%d, v%d" % (vT0, vT0, vT2))
        e("v_add_f32 v%d, v%d, v%d" % (vLs, vLs, vT0))
        e("s_waitcnt vmcnt(%d)" % NW)
        for dd in range(8):
            j = dd >> 1
            sel = sSelHi if dd & 1 else sSelLo
            for i2 in range(4):
                e("v_perm_b32 v%d, v%d, v%d, s%d" % (vVt + dd * 4 + i2, vV[p] + (2 * i2 + 1) * 4 + j, vV[p] + (2 * i2) * 4 + j, sel))
        loadV(p)
        for dd in range(8):
            e("v_mfma_f32_16x16x32_bf16 %s, %s, %s, %s" % (r(vO + dd * 4, 4), r(vVt + dd * 4, 4), r(vP, 4), r(vO + dd * 4, 4)))
        e("s_add_u32 s%d, s%d, s%d" % (sT, sT, sStr))
        e("s_cmp_ge_u32 s%d, s%d" % (sT, sNT))
        if p < P - 1:
            e("s_cbranch_scc1 L_epi")
        else:
            e("s_cbranch_scc0 L_loop")
    e("L_epi:")
    e("v_mov_b32 v%d, v%d" % (vT1, vLs))
    e("s_nop 1")
    e("v_permlane32_swap_b32 v%d, v%d" % (vLs, vT1))
    e("v_add_f32 v%d, v%d, v%d" % (vLs, vLs, vT1))
    e("v_mov_b32 v%d, v%d" % (vT1, vLs))
    e("s_nop 1")
    e("v_permlane16_swap_b32 v%d, v%d" % (vLs, vT1))
    e("v_add_f32 v%d, v%d, v%d" % (vAl + 1, vLs, vT1))
    e("v_mov_b32 v%d, v%d" % (vAl, vM))
    ML = W * 8192
    e("s_lshl_b32 s%d, s%d, 9" % (sTmp, sW))
    e("s_add_u32 s%d, s%d, %d" % (sTmp, sTmp, ML))
    e("v_lshl_add_u32 v%d, v%d, 3, s%d" % (vT0, vLane, sTmp))
    e("ds_write_b64 v%d, %s" % (vT0, r(vAl, 2)))
    e("s_nop 4")
    for k in range(8):
        rr, half = k >> 1, k & 1
        for ee in range(4):
            e("v_mov_b32 v%d, v%d" % (vVt + k * 4 + ee, vO + (half * 4 + ee) * 4 + rr))
    e("s_lshl_b32 s%d, s%d, 13" % (sTmp, sW))
    e("v_lshl_add_u32 v%d, v%d, 4, s%d" % (vT1, vLane, sTmp))
    for k in range(8):
        e("ds_write_b128 v%d, %s offset:%d" % (vT1, r(vVt + k * 4, 4), k * 1024))
    e("s_waitcnt lgkmcnt(0)")
    e("s_barrier")
    NPC = 8 // W
    e("s_waitcnt vmcnt(0)")
    vML = vK[0]
    vOP = vV[0]
    e("v_lshlrev_b32 v%d, 3, v%d" % (vT0, vLane))
    e("v_add_u32 v%d, %d, v%d" % (vT0, ML, vT0))
    for w in range(W):
        e("ds_read_b64 %s, v%d offset:%d" % (r(vML + 2 * w, 2), vT0, w * 512))
    e("s_lshl_b32 s%d, s%d, %d" % (sTmp, sW, 10 + (NPC - 1).bit_length() if NPC > 1 else 10))
    e("v_lshl_add_u32 v%d, v%d, 4, s%d" % (vT1, vLane, sTmp))
    for w in range(W):
        for pc in range(NPC):
            off = w * 8192 + pc * 1024
            e("ds_read_b128 %s, v%d offset:%d" % (r(vOP + (w * NPC + pc) * 4, 4), vT1, off))
    e("s_waitcnt lgkmcnt(%d)" % min(15, W * NPC))
    e("v_max_f32 v%d, v%d, v%d" % (vT2, vML, vML + 2))
    for w in range(2, W, 2):
        e("v_max3_f32 v%d, v%d, v%d, v%d" % (vT2, vT2, vML + 2 * w, vML + 2 * w + 2))
    for w in range(W):
        e("v_sub_f32 v%d, v%d, v%d" % (vML + 2 * w, vML + 2 * w, vT2))
    for w in range(W):
        e("v_exp_f32 v%d, v%d" % (vML + 2 * w, vML + 2 * w))
    e("s_nop 0")
    e("v_mul_f32 v%d, v%d, v%d" % (vT3, vML, vML + 1))
    for w in range(1, W):
        e("v_fmac_f32 v%d, v%d, v%d" % (vT3, vML + 2 * w, vML + 2 * w + 1))
    e("v_rcp_f32 v%d, v%d" % (vT3, vT3))
    e("s_waitcnt lgkmcnt(0)")
    for pc in range(NPC):
        for ee in range(4):
            e("v_mul_f32 v%d, v%d, v%d" % (vS + pc * 4 + ee, vML, vOP + pc * 4 + ee))
    for w in range(1, W):
        for pc in range(NPC):
            for ee in range(4):
                e("v_fmac_f32 v%d, v%d, v%d" % (vS + pc * 4 + ee, vML + 2 * w, vOP + (w * NPC + pc) * 4 + ee))
    for i in range(4 * NPC):
        e("v_mul_f32 v%d, v%d, v%d" % (vS + i, vS + i, vT3))
    for i in range(2 * NPC):
        e("v_cvt_pk_bf16_f32 v%d, v%d, v%d" % (vP + i, vS + 2 * i, vS + 2 * i + 1))
    e("v_lshlrev_b32 v%d, 6, v%d" % (vT0, vG))
    e("v_lshl_add_u32 v%d, v%d, 8, v%d" % (vT0, vC, vT0))
    e("s_lshl_b32 s%d, s%d, %d" % (sTmp, sW, 3 + (NPC - 1).bit_length() if NPC > 1 else 3))
    if NPC == 1:
        e("buffer_store_dwordx2 %s, v%d, %s, s%d offen" % (r(vP, 2), vT0, sr(sOUT), sTmp))
    else:
        e("buffer_store_dwordx4 %s, v%d, %s, s%d offen" % (r(vP, 4), vT0, sr(sOUT), sTmp))
    e("L_end:")
    e("s_endpgm")
    e('.section .rodata,"a"')
    e(".p2align 6")
    e(".amdhsa_kernel %s_kernel" % NAME)
    nvr = max(NV, 8)
    e("  .amdhsa_next_free_vgpr %d" % nvr)
    e("  .amdhsa_next_free_sgpr 64")
    e("  .amdhsa_accum_offset %d" % min(256, (nvr + 3) // 4 * 4))
    e("  .amdhsa_group_segment_fixed_size 0")
    e("  .amdhsa_kernarg_size 64")
    e("  .amdhsa_user_sgpr_count 2")
    e("  .amdhsa_user_sgpr_kernarg_segment_ptr 1")
    e("  .amdhsa_system_sgpr_workgroup_id_x 1")
    e(".end_amdhsa_kernel")
    return "\n".join(L) + "\n", NV

if __name__ == "__main__":
    ap = argparse.ArgumentParser()
    ap.add_argument("-W", type=int, default=8)
    ap.add_argument("-P", type=int, default=2)
    ap.add_argument("--nont", action="store_true")
    ap.add_argument("--kcoal", action="store_true")
    ap.add_argument("--bal", action="store_true")
    ap.add_argument("--act", type=int, default=None)
    ap.add_argument("-o", default="cdna_kernels/%s.s" % NAME)
    a = ap.parse_args()
    s, nv = gen(a.W, a.P, not a.nont, kcoal=a.kcoal, bal=a.bal, act=a.act)
    open(a.o, "w").write(s)
    print("NV", nv)
```
